```python
import torch

def _softmax(x, axis=-1):
    return torch.softmax(x, dim=axis)
def _gelu(x):
    return torch.nn.functional.gelu(x, approximate="tanh")
def _silu(x):
    return torch.nn.functional.silu(x)
def _sigmoid(x):
    return torch.sigmoid(x)
def _layernorm(x, axis=-1, eps=1e-5):
    m = x.mean(dim=axis, keepdim=True)
    v = x.var(dim=axis, keepdim=True, unbiased=False)
    return (x - m) / torch.sqrt(v + eps)
def _scatter_add(tgt, idx, src, axis=0):
    return tgt.clone().index_add_(axis, idx, src)
def _segment_sum(src, seg, n):
    out = torch.zeros((n,) + src.shape[1:], dtype=src.dtype)
    return out.index_add_(0, seg, src)
def _pad(x, pw):
    flat = tuple(v for pair in reversed(pw) for v in pair)
    return torch.nn.functional.pad(x, flat)

kernel_name = 'standalone__dcn_v2_cross__recsys'

def setup_inputs():

    _w = (lambda a: (lambda t: t.to(torch.bfloat16) if t.is_floating_point() else t)(torch.as_tensor(a)))
    B, F, D, L = 4096, 26, 128, 6
    Din = min(F * D, 1024)
    return {
        "x0": _w((lambda *s: torch.randn(*s, dtype=torch.bfloat16) * 0.05)(B, Din)),
        "ws": _w((lambda *s: torch.randn(*s, dtype=torch.bfloat16) * 0.05)(L, Din, Din)),
        "bs": _w((lambda *s: torch.randn(*s, dtype=torch.bfloat16) * 0.05)(L, Din)),
    }

def reference(x0, ws, bs):
    x = x0
    for l in range(ws.shape[0]):
        x = x0 * (x @ ws[l] + bs[l]) + x
    return x
```

```python
import sys

KN = "standalone__dcn_v2_cross__recsys_kernel"

class Asm:
    def __init__(self):
        self.L = []
        self.q = []
    def e(self, s): self.L.append("  " + s)
    def lab(self, s): self.L.append(s + ":")
    def raw(self, s): self.L.append(s)
    def lds(self, s, tag):
        self.e(s); self.q.append(tag)
    def need(self, *tags):
        idx = -1
        for t in tags:
            for i, x in enumerate(self.q):
                if x == t: idx = max(idx, i)
        if idx < 0: return
        n = len(self.q) - 1 - idx
        assert n <= 15
        self.e(f"s_waitcnt lgkmcnt({n})")
        self.q = self.q[idx + 1:]
    def drain(self):
        self.e("s_waitcnt lgkmcnt(0)"); self.q = []

ACC = 0; X0F = 64; XRES = 128; XF = 192; WP = 208; WQ = 224
VA = 240
VB = 242
VST = 250
VBIAS = 251
VLANE = 252
VT = 253
def acc(nt, mt): return ACC + 16 * mt + 4 * nt
def x0f(nt, mt): return X0F + 16 * mt + 4 * nt
def xres(nt, mt): return XRES + 16 * mt + 4 * nt
def xf(mt): return XF + 4 * mt
def wf(s, nt): return (WP if s == 0 else WQ) + 4 * nt

A_RING = 0; B_RING = 0x10000; BIAS_LDS = 0x20000
X_STRIDE = 8 << 20
FLAG_OFF = 48 << 20
STAMP_OFF = 200 << 20

def gen(o):
    NL = o.get('nl', 6)
    STAMPS = o.get('stamps', 0)
    STF = o.get('stf', 'sc1')
    LDF = o.get('ldf', 'sc1')
    SPIN = o.get('spin', 200000)
    PUBPOS = o.get('pubpos', 8)
    a = Asm(); e = a.e
    a.raw("; @launch grid=(256,1,1) block=(512,1,1) lds=163840")
    a.raw('.amdgcn_target "amdgcn-amd-amdhsa--gfx950"')
    a.raw(".text"); a.raw(f".globl {KN}"); a.raw(".p2align 8"); a.raw(f".type {KN},@function")
    a.lab(KN)
    e("s_cmp_ge_u32 s2, 256"); e("s_cbranch_scc1 L_end")
    e("s_load_dwordx4 s[4:7], s[0:1], 0")
    e("s_load_dwordx4 s[8:11], s[0:1], 16")
    e("s_load_dwordx4 s[12:15], s[0:1], 32")
    if STAMPS: e("s_memrealtime s[60:61]")
    e("v_lshrrev_b32 v1, 6, v0")
    e(f"v_and_b32 v{VLANE}, 63, v0")
    e("s_lshr_b32 s42, s2, 3")
    e("v_readfirstlane_b32 s40, v1")
    e("s_and_b32 s42, s42, 7")
    e("s_and_b32 s41, s2, 7")
    e("s_lshl_b32 s41, s41, 2")
    e("s_lshr_b32 s43, s2, 6")
    e("s_add_u32 s41, s41, s43")
    e("s_waitcnt lgkmcnt(0)")
    def srd(d, p, n):
        e(f"s_mov_b32 s{d}, s{p}"); e(f"s_and_b32 s{d+1}, s{p+1}, 0xffff")
        e(f"s_mov_b32 s{d+2}, {n}"); e(f"s_mov_b32 s{d+3}, 0x00020000")
    srd(16, 4, 8 << 20); srd(20, 6, 12 << 20); srd(24, 14, 256 << 20)
    e("s_cmp_ge_u32 s40, 4"); e("s_cbranch_scc1 L_loader")

    srd(28, 10, 8 << 20); srd(32, 8, 6 * 1024 * 2); srd(36, 12, 256)
    e("s_and_b32 s44, s40, 1")
    e("s_lshr_b32 s45, s40, 1")
    L = VLANE
    e(f"v_and_b32 v1, 15, v{L}")
    e(f"v_lshrrev_b32 v2, 4, v{L}")
    e("v_lshlrev_b32 v3, 11, v1")
    e("v_lshl_add_u32 v3, v2, 3, v3")
    e(f"v_mov_b32 v{VT}, v3")
    e("s_lshl_b32 s46, s41, 7"); e("s_lshl_b32 s47, s45, 6"); e("s_add_u32 s46, s46, s47")
    e("s_lshl_b32 s46, s46, 11")
    e("s_lshl_b32 s47, s42, 8"); e("s_add_u32 s46, s46, s47")
    e("s_lshl_b32 s47, s44, 7"); e("s_add_u32 s48, s46, s47")
    e("s_mov_b32 s46, s48")
    for mt in range(4):
        for nt in range(4):
            r = 192 + 8 * mt + 2 * nt
            e(f"buffer_load_dwordx2 v[{r}:{r+1}], v3, s[16:19], s46 offen offset:{nt*32}")
        if mt < 3: e("s_add_u32 s46, s46, 32768")
    e("v_and_b32 v4, 127, v0"); e("v_lshrrev_b32 v5, 7, v0")
    e("s_lshl_b32 s47, s42, 8")
    e("v_lshlrev_b32 v6, 11, v5"); e("v_lshl_add_u32 v6, v4, 1, v6"); e("v_add_u32 v6, s47, v6")
    for i in range(3):
        e(f"buffer_load_ushort v{8+i}, v6, s[32:35], 0 offen")
        if i < 2: e("v_add_u32 v6, 4096, v6")
    e("s_cmp_lg_u32 s40, 0"); e("s_cbranch_scc1 L_noreset")
    e("s_lshl_b32 s46, s41, 8"); e("s_lshl_b32 s47, s42, 4"); e("s_add_u32 s46, s46, s47")
    e(f"s_add_u32 s46, s46, {FLAG_OFF}")
    e(f"v_lshlrev_b32 v12, 2, v{L}"); e("v_mov_b32 v13, 0")
    e("s_mov_b64 exec, 0xf")
    e("buffer_store_dword v13, v12, s[24:27], s46 offen sc1")
    e("s_waitcnt vmcnt(0)")
    e("s_lshl_b32 s46, s41, 2")
    e("v_mov_b32 v13, 1")
    e("s_mov_b64 exec, 1")
    e("buffer_atomic_add v13, v12, s[36:39], s46 offen sc1")
    e("s_mov_b64 exec, -1")
    a.lab("L_noreset")
    def addr_vB2(natural, t0, t1, t2, t3):
        e(f"v_lshrrev_b32 v{t0}, 4, v{L}")
        e(f"v_bfe_u32 v{t1}, v{L}, 2, 2")
        for rd in range(2):
            k = t2; f = t3
            if natural:
                e(f"v_lshl_add_u32 v{k}, v{t0}, 3, v{t1}")
                if rd: e(f"v_add_u32 v{k}, 4, v{k}")
            else:
                e(f"v_lshl_add_u32 v{k}, v{t0}, 2, v{t1}")
                if rd: e(f"v_add_u32 v{k}, 16, v{k}")
            d0 = VB + rd
            e(f"v_lshrrev_b32 v{f}, 2, v{k}")
            e(f"v_lshrrev_b32 v{d0}, 3, v{k}")
            e(f"v_xor_b32 v{f}, v{f}, v{d0}")
            e(f"v_and_b32 v{f}, 1, v{f}")
            e(f"v_lshlrev_b32 v{f}, 2, v{f}")
            e(f"v_and_b32 v{d0}, 3, v{k}")
            e(f"v_or_b32 v{f}, v{f}, v{d0}")
            e(f"v_lshlrev_b32 v{f}, 5, v{f}")
            e(f"v_lshlrev_b32 v{k}, 8, v{k}")
            e(f"v_and_b32 v{d0}, 3, v{L}")
            e(f"v_lshl_add_u32 v{k}, v{d0}, 3, v{k}")
            e(f"v_add_u32 v{k}, {B_RING}, v{k}")
            e("s_lshl_b32 s46, s44, 7")
            for nt in range(4):
                d = VB + nt * 2 + rd
                e(f"s_add_u32 s47, s46, {nt*32}")
                e(f"v_xor_b32 v{d}, s47, v{f}")
                e(f"v_add_u32 v{d}, v{d}, v{k}")
    addr_vB2(True, 14, 15, 16, 17)
    e("v_and_b32 v4, 7, v1")
    e("s_lshl_b32 s46, s45, 13")
    e("v_lshlrev_b32 v5, 7, v1"); e("v_add_u32 v5, s46, v5")
    for ks in range(2):
        e(f"v_add_u32 v6, {4*ks}, v2"); e("v_xor_b32 v6, v6, v4")
        e(f"v_lshl_add_u32 v{VA+ks}, v6, 4, v5")
    e(f"v_lshlrev_b32 v{VST}, 4, v{L}")
    e("s_lshl_b32 s46, s44, 8"); e(f"s_add_u32 s46, s46, {BIAS_LDS}")
    e(f"v_lshl_add_u32 v{VBIAS}, v2, 4, s46")
    e("s_waitcnt vmcnt(0)")
    if STAMPS: e("s_memrealtime s[68:69]")
    e(f"v_lshlrev_b32 v7, 2, v0"); e(f"v_add_u32 v7, {BIAS_LDS}, v7")
    for i in range(3):
        e(f"v_lshlrev_b32 v{8+i}, 16, v{8+i}")
        e(f"ds_write_b32 v7, v{8+i} offset:{i*1024}")
    for mt in range(4):
        for nt in range(4):
            r = 192 + 8 * mt + 2 * nt
            d = x0f(nt, mt); x = xres(nt, mt)
            e(f"v_lshlrev_b32 v{d}, 16, v{r}"); e(f"v_and_b32 v{d+1}, 0xffff0000, v{r}")
            e(f"v_lshlrev_b32 v{d+2}, 16, v{r+1}"); e(f"v_and_b32 v{d+3}, 0xffff0000, v{r+1}")
            for i in range(4): e(f"v_mov_b32 v{x+i}, v{d+i}")
    e("s_waitcnt lgkmcnt(0)")
    e("s_barrier")
    if STAMPS: e("s_memrealtime s[62:63]")
    e("s_mov_b32 s49, 0")
    def rd_x(mt, slot, ks):
        a.lds(f"ds_read_b128 v[{xf(mt)}:{xf(mt)+3}], v{VA+ks} offset:{slot*16384 + mt*2048}", ('x', mt))
    def rd_w(s, nt, rd, slot, ks):
        r = wf(s, nt) + 2 * rd
        a.lds(f"ds_read_b64_tr_b16 v[{r}:{r+1}], v{VB+nt*2+rd} offset:{slot*16384 + ks*8192}", ('w', s, nt, rd))
    def rd_bias(nt, mt):
        a.lds(f"ds_read_b128 v[{acc(nt,mt)}:{acc(nt,mt)+3}], v{VBIAS} offset:{nt*64}", ('b', nt, mt))
    def mfma(nt, mt, s):
        a.need(('x', mt), ('w', s, nt, 0), ('w', s, nt, 1), ('b', nt, mt))
        c = acc(nt, mt)
        e(f"v_mfma_f32_16x16x32_bf16 v[{c}:{c+3}], v[{wf(s,nt)}:{wf(s,nt)+3}], v[{xf(mt)}:{xf(mt)+3}], v[{c}:{c+3}]")
    for mt in range(4):
        for nt in range(4): rd_bias(nt, mt)
    a.drain()
    for nt in range(4):
        rd_w(0, nt, 0, 0, 0); rd_w(0, nt, 1, 0, 0)
    for mt in range(4): rd_x(mt, 0, 0)
    a.drain()
    def kstep0(slot, publish=False):
        wl = [(nt, rd) for nt in range(4) for rd in range(2)]
        for mt in range(4):
            for nt in range(4):
                mfma(nt, mt, 0)
                i = mt * 4 + nt
                if i < 8: rd_w(1, wl[i][0], wl[i][1], slot, 1)
                if publish and i == PUBPOS: a.raw("@@PUBLISH@@")
            rd_x(mt, slot, 1)
    def kstep1(slot, last=False, switch_vb=False):
        ns = (slot + 1) & 3
        wl = [(nt, rd) for nt in range(4) for rd in range(2)]
        for mt in range(4):
            for nt in range(4):
                mfma(nt, mt, 1)
                if mt == 1 and nt == 3:
                    a.drain()
                    e("s_barrier")
                    if switch_vb: a.raw("@@SWITCHVB@@")
                    if not last:
                        rd_x(0, ns, 0)
                if mt == 2:
                    rd_w(0, wl[2*nt][0], wl[2*nt][1], ns, 0); rd_w(0, wl[2*nt+1][0], wl[2*nt+1][1], ns, 0)
                    if nt == 3 and not last: rd_x(1, ns, 0)
                if mt == 3 and nt == 0 and not last: rd_x(2, ns, 0)
            if mt == 3 and not last: rd_x(3, ns, 0)
    a.raw(".p2align 6")
    a.lab("L_layer")
    e("s_mov_b32 s50, 0")
    a.lab("L_iter")
    keepL = a.L; a.L = []; a.q = []
    kstep1(3); q0 = list(a.q); a.L = keepL
    start = len(a.L)
    for slot in range(4):
        kstep0(slot, publish=(slot == 0))
        if slot < 3:
            kstep1(slot)
        else:
            e("s_cmp_eq_u32 s50, 3"); e("s_cbranch_scc1 L_lastk")
            qsave = list(a.q)
            kstep1(slot)
            e("s_add_u32 s50, s50, 1")
            e("s_branch L_iter")
            qend = list(a.q)
            a.q = qsave
            a.lab("L_lastk")
            kstep1(slot, last=True, switch_vb=True)
    txt = "\n".join(a.L[start:])
    pub = "\n".join([
        "  s_cmp_lg_u32 s50, 0", "  s_cbranch_scc1 L_nopub", "  s_cmp_eq_u32 s49, 0", "  s_cbranch_scc1 L_nopub",
        "  s_waitcnt vmcnt(0)",
        f"  v_mov_b32 v{VT+1}, s49", f"  v_mov_b32 v{VT+2}, 0",
        "  s_mov_b64 exec, 1",
        f"  buffer_store_dword v{VT+1}, v{VT+2}, s[24:27], s51 offen {STF}",
        "  s_mov_b64 exec, -1",
        "L_nopub:"])
    txt = txt.replace("@@PUBLISH@@", pub)
    a.L = a.L[:start] + txt.split("\n")
    sw = Asm()
    save = a.L; a.L = []
    e("s_cmp_lg_u32 s49, 0"); e("s_cbranch_scc1 L_nosw")
    addr_vB2(False, VT+1, VT+2, wf(0,0), wf(0,1))
    a.lab("L_nosw")
    swtxt = a.L; a.L = save
    i = a.L.index("@@SWITCHVB@@"); a.L[i:i+1] = swtxt
    assert q0 == qend, (q0, qend)
    e("s_nop 7")
    e("s_add_u32 s52, s49, 1")
    e(f"s_cmp_eq_u32 s52, {NL}"); e("s_cbranch_scc1 L_final")
    e("s_lshl_b32 s46, s45, 13")
    e(f"v_add_u32 v{VA}, s46, v{VST}"); e(f"v_add_u32 v{VA+1}, 1024, v{VA}")
    e(f"v_add_u32 v{VBIAS}, 512, v{VBIAS}")
    e("s_lshl_b32 s46, s49, 23"); e("s_lshl_b32 s47, s41, 18"); e("s_add_u32 s46, s46, s47")
    e("s_lshl_b32 s47, s42, 15"); e("s_add_u32 s46, s46, s47")
    e("s_lshl_b32 s47, s44, 14"); e("s_add_u32 s46, s46, s47")
    e("s_lshl_b32 s47, s45, 13"); e("s_add_u32 s46, s46, s47")
    e("s_add_u32 s53, s46, 4096")
    e("s_lshl_b32 s47, s44, 14")
    e(f"v_add_u32 v{VT+1}, s47, v{VA}")
    outreg = {}
    for mt in range(4):
        for ks in range(2):
            outreg[(mt, ks)] = (WQ + 8 * mt + 4 * ks) if mt < 2 else (XF + 8 * (mt - 2) + 4 * ks)
    for mt in range(4):
        for nt in range(4):
            c = acc(nt, mt); x = xres(nt, mt); z = x0f(nt, mt)
            e(f"v_pk_fma_f32 v[{x}:{x+1}], v[{z}:{z+1}], v[{c}:{c+1}], v[{x}:{x+1}]")
            e(f"v_pk_fma_f32 v[{x+2}:{x+3}], v[{z+2}:{z+3}], v[{c+2}:{c+3}], v[{x+2}:{x+3}]")
            o_ = outreg[(mt, nt // 2)] + 2 * (nt & 1)
            rd_bias(nt, mt)
            e(f"v_cvt_pk_bf16_f32 v{o_}, v{x}, v{x+1}")
            e(f"v_cvt_pk_bf16_f32 v{o_+1}, v{x+2}, v{x+3}")
            if nt & 1:
                ks = nt // 2; r = outreg[(mt, ks)]
                so = "s46" if mt < 2 else "s53"
                e(f"buffer_store_dwordx4 v[{r}:{r+3}], v{VST}, s[24:27], {so} offen offset:{((mt&1)*2+ks)*1024} {STF}")
                a.lds(f"ds_write_b128 v{VT+1}, v[{r}:{r+3}] offset:{mt*2048+ks*1024}", ('st', mt, ks))
    e("s_lshl_b32 s51, s41, 8"); e("s_lshl_b32 s47, s42, 4"); e("s_add_u32 s51, s51, s47")
    e("s_lshl_b32 s47, s40, 2"); e("s_add_u32 s51, s51, s47"); e(f"s_add_u32 s51, s51, {FLAG_OFF}")
    a.drain()
    e("s_barrier")
    for mt in range(4): rd_x(mt, 0, 0)
    e("s_mov_b32 s49, s52")
    a.drain()
    e("s_branch L_layer")
    a.lab("L_final")
    a.drain()
    e("s_mov_b32 s46, s48")
    for mt in range(4):
        for nt in range(4):
            c = acc(nt, mt); x = xres(nt, mt); z = x0f(nt, mt)
            e(f"v_pk_fma_f32 v[{x}:{x+1}], v[{z}:{z+1}], v[{c}:{c+1}], v[{x}:{x+1}]")
            e(f"v_pk_fma_f32 v[{x+2}:{x+3}], v[{z+2}:{z+3}], v[{c+2}:{c+3}], v[{x+2}:{x+3}]")
            o_ = WP + 2 * ((mt * 4 + nt) % 16)
            e(f"v_cvt_pk_bf16_f32 v{o_}, v{x}, v{x+1}")
            e(f"v_cvt_pk_bf16_f32 v{o_+1}, v{x+2}, v{x+3}")
            e(f"buffer_store_dwordx2 v[{o_}:{o_+1}], v{VT}, s[28:31], s46 offen offset:{nt*32}")
        if mt < 3: e("s_add_u32 s46, s46, 32768")
    e("s_waitcnt vmcnt(0)")
    if STAMPS:
        e("s_memrealtime s[64:65]"); e("s_memtime s[66:67]"); e("s_waitcnt lgkmcnt(0)")
        e("v_mov_b32 v20, s60"); e("v_writelane_b32 v20, s62, 1"); e("v_writelane_b32 v20, s64, 2"); e("v_writelane_b32 v20, s68, 3")
        e("v_mov_b32 v21, s66")
        e("s_branch L_stamp")
    e("s_branch L_done")

    a.lab("L_loader")
    e("s_sub_u32 s44, s40, 4")
    e("s_cmp_ge_u32 s44, 2"); e("s_cbranch_scc1 L_loadB")
    srd(36, 12, 256)
    e(f"v_lshrrev_b32 v3, 3, v{L}"); e(f"v_and_b32 v4, 7, v{L}"); e("v_xor_b32 v4, v4, v3")
    e("v_lshlrev_b32 v4, 4, v4"); e("v_lshl_add_u32 v3, v3, 11, v4")
    e(f"v_lshlrev_b32 v5, 4, v{L}")
    e(f"v_lshlrev_b32 v6, 2, v{L}")
    e("s_lshl_b32 s45, s44, 13")
    e("s_lshl_b32 s48, s42, 1")
    e("s_lshl_b32 s46, s41, 7"); e("s_lshl_b32 s47, s44, 6"); e("s_add_u32 s46, s46, s47"); e("s_lshl_b32 s46, s46, 11")
    def issueA0(slot):
        e("s_and_b32 s49, s48, 15"); e("s_lshl_b32 s49, s49, 7"); e("s_add_u32 s49, s49, s46")
        for grp in range(2):
            e(f"s_add_u32 m0, s45, {slot*16384 + grp*4096}")
            if grp: e(f"s_add_u32 s49, s49, {16384+3072}")
            else: e("s_nop 0")
            for ii in range(4):
                e(f"buffer_load_dwordx4 v3, s[16:19], s49 offen offset:{ii*1024} lds")
                if ii < 3: e(f"s_add_u32 s49, s49, {16384-1024}")
        e("s_add_u32 s48, s48, 1")
    def issueA(slot):
        e("s_and_b32 s49, s48, 15"); e("s_lshl_b32 s49, s49, 14"); e("s_add_u32 s49, s49, s46")
        for grp in range(2):
            e(f"s_add_u32 m0, s45, {slot*16384 + grp*4096}")
            if grp: e("s_add_u32 s49, s49, 4096")
            else: e("s_nop 0")
            for ii in range(4):
                e(f"buffer_load_dwordx4 v5, s[24:27], s49 offen offset:{ii*1024} {LDF} lds")
        e("s_add_u32 s48, s48, 1")
    def stamp():
        if not STAMPS: return
        e("s_memrealtime s[54:55]"); e("s_memtime s[56:57]"); e("s_mov_b32 m0, s53"); e("s_waitcnt lgkmcnt(0)")
        e("v_writelane_b32 v20, s54, m0"); e("v_writelane_b32 v21, s56, m0"); e("s_add_u32 s53, s53, 1")
    e("s_mov_b32 s53, 0"); e("v_mov_b32 v20, 0"); e("v_mov_b32 v21, 0")
    stamp()
    PT = o.get('pt', 0)
    def pretouch(layer_sreg_or_const):
        if not PT: return
        e("s_lshl_b32 s47, s47, 23"); e("s_lshl_b32 s52, s41, 18"); e("s_add_u32 s47, s47, s52")
        n = min(64, 262144 // PT)
        if n < 64: e(f"s_mov_b64 exec, {hex((1 << n) - 1)}")
        e(f"buffer_load_dword v9, v10, s[24:27], s47 offen sc1")
        if n < 64: e("s_mov_b64 exec, -1")
    if PT:
        import math
        e(f"v_lshlrev_b32 v10, {int(math.log2(PT))}, v{L}")
    for slot in range(4): issueA0(slot)
    stamp()
    e("s_waitcnt vmcnt(24)")
    stamp()
    e("s_barrier")
    stamp()
    e("s_mov_b32 s47, 0"); pretouch(0)
    e("s_mov_b32 s47, 3")
    a.lab("L_a0loop")
    for slot in range(4):
        e("s_waitcnt vmcnt(16)"); e("s_barrier"); issueA0(slot)
    e("s_sub_u32 s47, s47, 1"); e("s_cmp_lg_u32 s47, 0"); e("s_cbranch_scc1 L_a0loop")
    def tailA():
        e("s_waitcnt vmcnt(16)"); e("s_barrier")
        e("s_waitcnt vmcnt(8)"); e("s_barrier")
        e("s_waitcnt vmcnt(0)"); e("s_barrier")
        e("s_barrier")
        stamp()
    tailA()
    e("s_mov_b32 s50, 1")
    a.lab("L_alayer")
    e(f"s_cmp_eq_u32 s50, {NL}"); e("s_cbranch_scc1 %s" % ("L_stamp" if STAMPS else "L_done"))
    e("s_barrier")
    stamp()
    e("s_barrier")
    stamp()
    e("s_cmp_lg_u32 s50, 1"); e("s_cbranch_scc1 L_noarr")
    e("s_lshl_b32 s47, s41, 2"); e("v_mov_b32 v7, 0"); e(f"s_mov_b32 s51, {SPIN}")
    a.lab("L_arr")
    e("buffer_load_dword v8, v7, s[36:39], s47 offen sc1")
    e("s_waitcnt vmcnt(0)")
    e("v_readfirstlane_b32 s52, v8"); e("s_nop 3")
    e("s_cmp_ge_u32 s52, 8"); e("s_cbranch_scc1 L_noarr")
    e("s_sub_u32 s51, s51, 1"); e("s_cmp_lg_u32 s51, 0"); e("s_cbranch_scc1 L_arr")
    a.lab("L_noarr")
    e("s_lshl_b32 s47, s41, 8"); e(f"s_add_u32 s47, s47, {FLAG_OFF}"); e(f"s_mov_b32 s51, {SPIN}")
    e("s_mov_b32 exec_hi, 0")
    a.lab("L_poll")
    e("buffer_load_dword v8, v6, s[24:27], s47 offen sc1")
    e("s_waitcnt vmcnt(0)")
    e("v_cmp_gt_u32 vcc, s50, v8")
    e("s_cmp_eq_u64 vcc, 0"); e("s_cbranch_scc1 L_ready")
    e("s_sub_u32 s51, s51, 1"); e("s_cmp_lg_u32 s51, 0"); e("s_cbranch_scc1 L_poll")
    a.lab("L_ready")
    e("s_mov_b64 exec, -1")
    stamp()
    e("s_sub_u32 s46, s50, 1"); e("s_lshl_b32 s46, s46, 23"); e("s_lshl_b32 s47, s41, 18"); e("s_add_u32 s46, s46, s47")
    e("s_add_u32 s46, s46, s45")
    e("s_lshl_b32 s48, s42, 1"); e("s_add_u32 s48, s48, 2")
    if o.get('lat', 0):
        issueA(2); stamp(); e("s_waitcnt vmcnt(7)"); stamp(); e("s_waitcnt vmcnt(0)"); stamp(); issueA(3); e("s_waitcnt vmcnt(8)")
    else:
        issueA(2); issueA(3)
        e("s_waitcnt vmcnt(8)")
        stamp()
    e("s_barrier")
    issueA(0); issueA(1)
    e("s_mov_b32 s47, s50"); pretouch(0)
    for s in range(2, 12):
        e("s_waitcnt vmcnt(16)"); e("s_barrier"); issueA(s & 3)
    tailA()
    e("s_add_u32 s50, s50, 1")
    e("s_branch L_alayer")
    a.lab("L_loadB")
    e("s_sub_u32 s44, s44, 2")
    e(f"v_lshrrev_b32 v4, 4, v{L}"); e(f"v_and_b32 v5, 15, v{L}")
    e("v_lshlrev_b32 v6, 1, v4"); e("v_xor_b32 v5, v5, v6"); e("v_lshlrev_b32 v5, 4, v5")
    e("v_lshl_add_u32 v3, v4, 11, v5"); e("v_xor_b32 v7, 128, v3")
    e("s_lshl_b32 s45, s44, 13"); e(f"s_add_u32 s45, s45, {B_RING}")
    e("s_lshl_b32 s46, s44, 16"); e("s_lshl_b32 s43, s42, 8"); e("s_add_u32 s46, s46, s43")
    e("s_lshl_b32 s48, s42, 1")
    e("s_mov_b32 s50, 0")
    def issueB(slot):
        e("s_and_b32 s49, s48, 15"); e("s_lshl_b32 s49, s49, 17"); e("s_add_u32 s49, s49, s46")
        e("s_lshr_b32 s47, s50, 4"); e("s_lshl_b32 s47, s47, 21"); e("s_add_u32 s49, s49, s47")
        for grp in range(2):
            e(f"s_add_u32 m0, s45, {slot*16384 + grp*4096}")
            if grp: e(f"s_add_u32 s49, s49, {32768 - 3*7168}")
            else: e("s_nop 0")
            for ii in range(4):
                vr = 7 if ii in (1, 2) else 3
                e(f"buffer_load_dwordx4 v{vr}, s[20:23], s49 offen offset:{ii*1024} lds")
                if ii < 3: e("s_add_u32 s49, s49, 7168")
        e("s_add_u32 s48, s48, 1"); e("s_add_u32 s50, s50, 1")
    e("s_mov_b32 s53, 0"); e("v_mov_b32 v20, 0"); e("v_mov_b32 v21, 0")
    stamp()
    for slot in range(4): issueB(slot)
    stamp()
    e("s_waitcnt vmcnt(24)")
    stamp()
    e("s_barrier")
    e("s_mov_b32 s51, 0")
    a.lab("L_blayer")
    e("s_add_u32 s51, s51, 1")
    e(f"s_cmp_eq_u32 s51, {NL}"); e("s_cbranch_scc1 L_blast")
    e("s_mov_b32 s52, 4")
    a.lab("L_bloop")
    for slot in range(4):
        e("s_waitcnt vmcnt(16)"); e("s_barrier"); issueB(slot)
    e("s_sub_u32 s52, s52, 1"); e("s_cmp_lg_u32 s52, 0"); e("s_cbranch_scc1 L_bloop")
    e("s_barrier")
    e("s_branch L_blayer")
    a.lab("L_blast")
    e("s_mov_b32 s52, 3")
    a.lab("L_bloop2")
    for slot in range(4):
        e("s_waitcnt vmcnt(16)"); e("s_barrier"); issueB(slot)
    e("s_sub_u32 s52, s52, 1"); e("s_cmp_lg_u32 s52, 0"); e("s_cbranch_scc1 L_bloop2")
    e("s_waitcnt vmcnt(16)"); e("s_barrier")
    e("s_waitcnt vmcnt(8)"); e("s_barrier")
    e("s_waitcnt vmcnt(0)"); e("s_barrier")
    e("s_barrier")
    if STAMPS:
        e("s_branch L_stamp")
        a.lab("L_stamp")
        e("s_lshl_b32 s43, s2, 3"); e("s_add_u32 s43, s43, s40"); e("s_lshl_b32 s43, s43, 9")
        e(f"s_add_u32 s43, s43, {STAMP_OFF}")
        e(f"v_lshlrev_b32 v22, 2, v{L}")
        e("buffer_store_dword v20, v22, s[24:27], s43 offen")
        e("buffer_store_dword v21, v22, s[24:27], s43 offen offset:256")
        e("s_waitcnt vmcnt(0)")
    a.lab("L_done")
    a.lab("L_end")
    e("s_endpgm")
    a.raw('.section .rodata,"a"'); a.raw(".p2align 6"); a.raw(f".amdhsa_kernel {KN}")
    for s in ["next_free_vgpr 256", "next_free_sgpr 96", "accum_offset 256", "group_segment_fixed_size 0",
              "kernarg_size 48", "user_sgpr_count 2", "user_sgpr_kernarg_segment_ptr 1", "system_sgpr_workgroup_id_x 1"]:
        a.raw("  .amdhsa_" + s)
    a.raw(".end_amdhsa_kernel")
    return "\n".join(l for l in a.L if l != "@@STAMP@@") + "\n"

if __name__ == "__main__":
    out = sys.argv[1]; opts = {}
    for x in sys.argv[2:]:
        k, v = x.split("=")
        try: v = int(v)
        except: v = v.replace('+', ' ')
        opts[k] = v
    open(out, "w").write(gen(opts))
```

```python
import sys

KN = "standalone__dcn_v2_cross__recsys_kernel"

class Asm:
    def __init__(self):
        self.L = []
        self.q = []
    def e(self, s): self.L.append("  " + s)
    def lab(self, s): self.L.append(s + ":")
    def raw(self, s): self.L.append(s)
    def lds(self, s, tag):
        self.e(s); self.q.append(tag)
    def need(self, *tags):
        idx = -1
        for t in tags:
            for i, x in enumerate(self.q):
                if x == t: idx = max(idx, i)
        if idx < 0: return
        n = len(self.q) - 1 - idx
        assert n <= 15
        self.e(f"s_waitcnt lgkmcnt({n})")
        self.q = self.q[idx + 1:]
    def drain(self):
        self.e("s_waitcnt lgkmcnt(0)"); self.q = []

ACC = 0; X0F = 64; XRES = 128; XF = 192; WP = 208; WQ = 224
VA = 240
VB = 242
VST = 250
VBIAS = 251
VLANE = 252
VT = 253
def acc(nt, mt): return ACC + 16 * mt + 4 * nt
def x0f(nt, mt): return X0F + 16 * mt + 4 * nt
def xres(nt, mt): return XRES + 16 * mt + 4 * nt
def xf(mt): return XF + 4 * mt
def wf(s, nt): return (WP if s == 0 else WQ) + 4 * nt

A_RING = 0; B_RING = 0x10000; BIAS_LDS = 0x20000
X_STRIDE = 8 << 20
FLAG_OFF = 48 << 20
STAMP_OFF = 200 << 20

def gen(o):
    NL = o.get('nl', 6)
    STAMPS = o.get('stamps', 0)
    STF = o.get('stf', 'sc1')
    LDF = o.get('ldf', 'sc1')
    SPIN = o.get('spin', 200000)
    PUBPOS = o.get('pubpos', 8)
    a = Asm(); e = a.e
    a.raw("; @launch grid=(256,1,1) block=(512,1,1) lds=163840")
    a.raw('.amdgcn_target "amdgcn-amd-amdhsa--gfx950"')
    a.raw(".text"); a.raw(f".globl {KN}"); a.raw(".p2align 8"); a.raw(f".type {KN},@function")
    a.lab(KN)
    e("s_cmp_ge_u32 s2, 256"); e("s_cbranch_scc1 L_end")
    e("s_load_dwordx4 s[4:7], s[0:1], 0")
    e("s_load_dwordx4 s[8:11], s[0:1], 16")
    e("s_load_dwordx4 s[12:15], s[0:1], 32")
    DBG = o.get('dbg', 0)
    if STAMPS or DBG: e("s_memrealtime s[60:61]")
    e("v_lshrrev_b32 v1, 6, v0")
    e(f"v_and_b32 v{VLANE}, 63, v0")
    e("s_lshr_b32 s42, s2, 3")
    e("v_readfirstlane_b32 s40, v1")
    e("s_and_b32 s42, s42, 7")
    e("s_and_b32 s41, s2, 7")
    e("s_lshl_b32 s41, s41, 2")
    e("s_lshr_b32 s43, s2, 6")
    e("s_add_u32 s41, s41, s43")
    e("s_waitcnt lgkmcnt(0)")
    def srd(d, p, n):
        e(f"s_mov_b32 s{d}, s{p}"); e(f"s_and_b32 s{d+1}, s{p+1}, 0xffff")
        e(f"s_mov_b32 s{d+2}, {n}"); e(f"s_mov_b32 s{d+3}, 0x00020000")
    srd(16, 4, 8 << 20); srd(20, 6, 12 << 20); srd(24, 14, 256 << 20)
    e("s_cmp_ge_u32 s40, 4"); e("s_cbranch_scc1 L_loader")

    srd(28, 10, 8 << 20); srd(32, 8, 6 * 1024 * 2); srd(36, 12, 256)
    e("s_and_b32 s44, s40, 1")
    e("s_lshr_b32 s45, s40, 1")
    L = VLANE
    e(f"v_and_b32 v1, 15, v{L}")
    e(f"v_lshrrev_b32 v2, 4, v{L}")
    e("v_lshlrev_b32 v3, 11, v1")
    e("v_lshl_add_u32 v3, v2, 3, v3")
    e(f"v_mov_b32 v{VT}, v3")
    e("s_lshl_b32 s46, s41, 7"); e("s_lshl_b32 s47, s45, 6"); e("s_add_u32 s46, s46, s47")
    e("s_lshl_b32 s46, s46, 11")
    e("s_lshl_b32 s47, s42, 8"); e("s_add_u32 s46, s46, s47")
    e("s_lshl_b32 s47, s44, 7"); e("s_add_u32 s48, s46, s47")
    e("s_mov_b32 s46, s48")
    for mt in range(4):
        for nt in range(4):
            r = 192 + 8 * mt + 2 * nt
            e(f"buffer_load_dwordx2 v[{r}:{r+1}], v3, s[16:19], s46 offen offset:{nt*32}")
        if mt < 3: e("s_add_u32 s46, s46, 32768")
    e("v_and_b32 v4, 127, v0"); e("v_lshrrev_b32 v5, 7, v0")
    e("s_lshl_b32 s47, s42, 8")
    e("v_lshlrev_b32 v6, 11, v5"); e("v_lshl_add_u32 v6, v4, 1, v6"); e("v_add_u32 v6, s47, v6")
    for i in range(3):
        e(f"buffer_load_ushort v{8+i}, v6, s[32:35], 0 offen")
        if i < 2: e("v_add_u32 v6, 4096, v6")
    e("s_cmp_lg_u32 s40, 0"); e("s_cbranch_scc1 L_noreset")
    e("s_lshl_b32 s46, s41, 8"); e("s_lshl_b32 s47, s42, 4"); e("s_add_u32 s46, s46, s47")
    e(f"s_add_u32 s46, s46, {FLAG_OFF}")
    e(f"v_lshlrev_b32 v12, 2, v{L}"); e("v_mov_b32 v13, 0")
    e("s_mov_b64 exec, 0xf")
    e("buffer_store_dword v13, v12, s[24:27], s46 offen sc1")
    e("s_waitcnt vmcnt(0)")
    e("s_lshl_b32 s46, s41, 2"); e("s_add_u32 s46, s46, 128")
    e("v_mov_b32 v13, 1")
    e("s_mov_b64 exec, 1")
    e("buffer_atomic_add v13, v12, s[36:39], s46 offen sc1")
    e("s_mov_b64 exec, -1")
    a.lab("L_noreset")
    def addr_vB2(natural, t0, t1, t2, t3):
        e(f"v_lshrrev_b32 v{t0}, 4, v{L}")
        e(f"v_bfe_u32 v{t1}, v{L}, 2, 2")
        for rd in range(2):
            k = t2; f = t3
            if natural:
                e(f"v_lshl_add_u32 v{k}, v{t0}, 3, v{t1}")
                if rd: e(f"v_add_u32 v{k}, 4, v{k}")
            else:
                e(f"v_lshl_add_u32 v{k}, v{t0}, 2, v{t1}")
                if rd: e(f"v_add_u32 v{k}, 16, v{k}")
            d0 = VB + rd
            e(f"v_lshrrev_b32 v{f}, 2, v{k}")
            e(f"v_lshrrev_b32 v{d0}, 3, v{k}")
            e(f"v_xor_b32 v{f}, v{f}, v{d0}")
            e(f"v_and_b32 v{f}, 1, v{f}")
            e(f"v_lshlrev_b32 v{f}, 2, v{f}")
            e(f"v_and_b32 v{d0}, 3, v{k}")
            e(f"v_or_b32 v{f}, v{f}, v{d0}")
            e(f"v_lshlrev_b32 v{f}, 5, v{f}")
            e(f"v_lshlrev_b32 v{k}, 8, v{k}")
            e(f"v_and_b32 v{d0}, 3, v{L}")
            e(f"v_lshl_add_u32 v{k}, v{d0}, 3, v{k}")
            e(f"v_add_u32 v{k}, {B_RING}, v{k}")
            e("s_lshl_b32 s46, s44, 7")
            for nt in range(4):
                d = VB + nt * 2 + rd
                e(f"s_add_u32 s47, s46, {nt*32}")
                e(f"v_xor_b32 v{d}, s47, v{f}")
                e(f"v_add_u32 v{d}, v{d}, v{k}")
    addr_vB2(True, 14, 15, 16, 17)
    e("v_and_b32 v4, 7, v1")
    e("s_lshl_b32 s46, s45, 13")
    e("v_lshlrev_b32 v5, 7, v1"); e("v_add_u32 v5, s46, v5")
    for ks in range(2):
        e(f"v_add_u32 v6, {4*ks}, v2"); e("v_xor_b32 v6, v6, v4")
        e(f"v_lshl_add_u32 v{VA+ks}, v6, 4, v5")
    e(f"v_lshlrev_b32 v{VST}, 4, v{L}")
    e("s_lshl_b32 s46, s44, 8"); e(f"s_add_u32 s46, s46, {BIAS_LDS}")
    e(f"v_lshl_add_u32 v{VBIAS}, v2, 4, s46")
    e("s_waitcnt vmcnt(0)")
    if STAMPS: e("s_memrealtime s[68:69]")
    e(f"v_lshlrev_b32 v7, 2, v0"); e(f"v_add_u32 v7, {BIAS_LDS}, v7")
    for i in range(3):
        e(f"v_lshlrev_b32 v{8+i}, 16, v{8+i}")
        e(f"ds_write_b32 v7, v{8+i} offset:{i*1024}")
    for mt in range(4):
        for nt in range(4):
            r = 192 + 8 * mt + 2 * nt
            d = x0f(nt, mt); x = xres(nt, mt)
            e(f"v_lshlrev_b32 v{d}, 16, v{r}"); e(f"v_and_b32 v{d+1}, 0xffff0000, v{r}")
            e(f"v_lshlrev_b32 v{d+2}, 16, v{r+1}"); e(f"v_and_b32 v{d+3}, 0xffff0000, v{r+1}")
            for i in range(4): e(f"v_mov_b32 v{x+i}, v{d+i}")
    e("s_waitcnt lgkmcnt(0)")
    e("s_barrier")
    if STAMPS or DBG: e("s_memrealtime s[62:63]")
    e("s_mov_b32 s49, 0")
    def rd_x(mt, slot, ks):
        a.lds(f"ds_read_b128 v[{xf(mt)}:{xf(mt)+3}], v{VA+ks} offset:{slot*16384 + mt*2048}", ('x', mt))
    def rd_w(s, nt, rd, slot, ks):
        r = wf(s, nt) + 2 * rd
        a.lds(f"ds_read_b64_tr_b16 v[{r}:{r+1}], v{VB+nt*2+rd} offset:{slot*16384 + ks*8192}", ('w', s, nt, rd))
    def rd_bias(nt, mt):
        a.lds(f"ds_read_b128 v[{acc(nt,mt)}:{acc(nt,mt)+3}], v{VBIAS} offset:{nt*64}", ('b', nt, mt))
    def mfma(nt, mt, s):
        a.need(('x', mt), ('w', s, nt, 0), ('w', s, nt, 1), ('b', nt, mt))
        c = acc(nt, mt)
        e(f"v_mfma_f32_16x16x32_bf16 v[{c}:{c+3}], v[{wf(s,nt)}:{wf(s,nt)+3}], v[{xf(mt)}:{xf(mt)+3}], v[{c}:{c+3}]")
    for mt in range(4):
        for nt in range(4): rd_bias(nt, mt)
    a.drain()
    for nt in range(4):
        rd_w(0, nt, 0, 0, 0); rd_w(0, nt, 1, 0, 0)
    for mt in range(4): rd_x(mt, 0, 0)
    a.drain()
    def kstep0(slot, publish=False):
        wl = [(nt, rd) for nt in range(4) for rd in range(2)]
        for mt in range(4):
            for nt in range(4):
                mfma(nt, mt, 0)
                i = mt * 4 + nt
                if i < 8: rd_w(1, wl[i][0], wl[i][1], slot, 1)
                if publish and i == PUBPOS: a.raw("@@PUBLISH@@")
            rd_x(mt, slot, 1)
    def kstep1(slot, last=False, switch_vb=False):
        ns = (slot + 1) & 3
        wl = [(nt, rd) for nt in range(4) for rd in range(2)]
        for mt in range(4):
            for nt in range(4):
                mfma(nt, mt, 1)
                if mt == 1 and nt == 3:
                    a.drain()
                    e("s_barrier")
                    if switch_vb: a.raw("@@SWITCHVB@@")
                    if not last:
                        rd_x(0, ns, 0)
                if mt == 2:
                    rd_w(0, wl[2*nt][0], wl[2*nt][1], ns, 0); rd_w(0, wl[2*nt+1][0], wl[2*nt+1][1], ns, 0)
                    if nt == 3 and not last: rd_x(1, ns, 0)
                if mt == 3 and nt == 0 and not last: rd_x(2, ns, 0)
            if mt == 3 and not last: rd_x(3, ns, 0)
    a.raw(".p2align 6")
    a.lab("L_layer")
    e("s_mov_b32 s50, 0")
    a.lab("L_iter")
    keepL = a.L; a.L = []; a.q = []
    kstep1(3); q0 = list(a.q); a.L = keepL
    start = len(a.L)
    for slot in range(4):
        kstep0(slot, publish=(slot == 0))
        if slot < 3:
            kstep1(slot)
        else:
            e("s_cmp_eq_u32 s50, 3"); e("s_cbranch_scc1 L_lastk")
            qsave = list(a.q)
            kstep1(slot)
            e("s_add_u32 s50, s50, 1")
            e("s_branch L_iter")
            qend = list(a.q)
            a.q = qsave
            a.lab("L_lastk")
            kstep1(slot, last=True, switch_vb=True)
    txt = "\n".join(a.L[start:])
    pub = "\n".join([
        "  s_cmp_lg_u32 s50, 0", "  s_cbranch_scc1 L_nopub", "  s_cmp_eq_u32 s49, 0", "  s_cbranch_scc1 L_nopub",
        "  s_waitcnt vmcnt(0)",
        f"  v_mov_b32 v{VT+1}, s49", f"  v_mov_b32 v{VT+2}, 0",
        "  s_mov_b64 exec, 1",
        f"  buffer_store_dword v{VT+1}, v{VT+2}, s[24:27], s51 offen {STF}",
        "  s_mov_b64 exec, -1",
        "L_nopub:"])
    txt = txt.replace("@@PUBLISH@@", pub)
    a.L = a.L[:start] + txt.split("\n")
    sw = Asm()
    save = a.L; a.L = []
    e("s_cmp_lg_u32 s49, 0"); e("s_cbranch_scc1 L_nosw")
    addr_vB2(False, VT+1, VT+2, wf(0,0), wf(0,1))
    a.lab("L_nosw")
    swtxt = a.L; a.L = save
    i = a.L.index("@@SWITCHVB@@"); a.L[i:i+1] = swtxt
    assert q0 == qend, (q0, qend)
    e("s_nop 7")
    e("s_add_u32 s52, s49, 1")
    e(f"s_cmp_eq_u32 s52, {NL}"); e("s_cbranch_scc1 L_final")
    e("s_lshl_b32 s46, s45, 13")
    e(f"v_add_u32 v{VA}, s46, v{VST}"); e(f"v_add_u32 v{VA+1}, 1024, v{VA}")
    e(f"v_add_u32 v{VBIAS}, 512, v{VBIAS}")
    e("s_lshl_b32 s46, s49, 23"); e("s_lshl_b32 s47, s41, 18"); e("s_add_u32 s46, s46, s47")
    e("s_lshl_b32 s47, s42, 15"); e("s_add_u32 s46, s46, s47")
    e("s_lshl_b32 s47, s44, 14"); e("s_add_u32 s46, s46, s47")
    e("s_lshl_b32 s47, s45, 13"); e("s_add_u32 s46, s46, s47")
    e("s_add_u32 s53, s46, 4096")
    e("s_lshl_b32 s47, s44, 14")
    e(f"v_add_u32 v{VT+1}, s47, v{VA}")
    outreg = {}
    for mt in range(4):
        for ks in range(2):
            outreg[(mt, ks)] = (WQ + 8 * mt + 4 * ks) if mt < 2 else (XF + 8 * (mt - 2) + 4 * ks)
    for mt in range(4):
        for nt in range(4):
            c = acc(nt, mt); x = xres(nt, mt); z = x0f(nt, mt)
            e(f"v_pk_fma_f32 v[{x}:{x+1}], v[{z}:{z+1}], v[{c}:{c+1}], v[{x}:{x+1}]")
            e(f"v_pk_fma_f32 v[{x+2}:{x+3}], v[{z+2}:{z+3}], v[{c+2}:{c+3}], v[{x+2}:{x+3}]")
            o_ = outreg[(mt, nt // 2)] + 2 * (nt & 1)
            rd_bias(nt, mt)
            e(f"v_cvt_pk_bf16_f32 v{o_}, v{x}, v{x+1}")
            e(f"v_cvt_pk_bf16_f32 v{o_+1}, v{x+2}, v{x+3}")
            if nt & 1:
                ks = nt // 2; r = outreg[(mt, ks)]
                so = "s46" if mt < 2 else "s53"
                e(f"buffer_store_dwordx4 v[{r}:{r+3}], v{VST}, s[24:27], {so} offen offset:{((mt&1)*2+ks)*1024} {STF}")
                a.lds(f"ds_write_b128 v{VT+1}, v[{r}:{r+3}] offset:{mt*2048+ks*1024}", ('st', mt, ks))
    e("s_lshl_b32 s51, s41, 8"); e("s_lshl_b32 s47, s42, 4"); e("s_add_u32 s51, s51, s47")
    e("s_lshl_b32 s47, s40, 2"); e("s_add_u32 s51, s51, s47"); e(f"s_add_u32 s51, s51, {FLAG_OFF}")
    a.drain()
    e("s_barrier")
    for mt in range(4): rd_x(mt, 0, 0)
    e("s_mov_b32 s49, s52")
    a.drain()
    e("s_branch L_layer")
    a.lab("L_final")
    a.drain()
    e("s_mov_b32 s46, s48")
    for mt in range(4):
        for nt in range(4):
            c = acc(nt, mt); x = xres(nt, mt); z = x0f(nt, mt)
            e(f"v_pk_fma_f32 v[{x}:{x+1}], v[{z}:{z+1}], v[{c}:{c+1}], v[{x}:{x+1}]")
            e(f"v_pk_fma_f32 v[{x+2}:{x+3}], v[{z+2}:{z+3}], v[{c+2}:{c+3}], v[{x+2}:{x+3}]")
            o_ = WP + 2 * ((mt * 4 + nt) % 16)
            e(f"v_cvt_pk_bf16_f32 v{o_}, v{x}, v{x+1}")
            e(f"v_cvt_pk_bf16_f32 v{o_+1}, v{x+2}, v{x+3}")
            e(f"buffer_store_dwordx2 v[{o_}:{o_+1}], v{VT}, s[28:31], s46 offen offset:{nt*32}")
        if mt < 3: e("s_add_u32 s46, s46, 32768")
    e("s_waitcnt vmcnt(0)")
    if DBG:
        e("s_memrealtime s[64:65]"); e("s_waitcnt lgkmcnt(0)")
        e("s_not_b32 s66, s60")
        e("v_mov_b32 v20, s66"); e("v_writelane_b32 v20, s60, 1"); e("v_writelane_b32 v20, s62, 2"); e("v_writelane_b32 v20, s64, 3")
        e("s_not_b32 s66, s64"); e("v_writelane_b32 v20, s66, 4")
        e("s_not_b32 s66, s62"); e("v_writelane_b32 v20, s66, 5")
        e(f"v_lshlrev_b32 v22, 2, v{L}")
        e("s_mov_b64 exec, 0x3f")
        e("buffer_atomic_umax v20, v22, s[36:39], 0 offen sc1")
        e("s_mov_b64 exec, -1")
        e("s_waitcnt vmcnt(0)")
    if STAMPS:
        e("s_memrealtime s[64:65]"); e("s_memtime s[66:67]"); e("s_waitcnt lgkmcnt(0)")
        e("v_mov_b32 v20, s60"); e("v_writelane_b32 v20, s62, 1"); e("v_writelane_b32 v20, s64, 2"); e("v_writelane_b32 v20, s68, 3")
        e("v_mov_b32 v21, s66")
        e("s_branch L_stamp")
    e("s_branch L_done")

    a.lab("L_loader")
    e("s_sub_u32 s44, s40, 4")
    e("s_cmp_ge_u32 s44, 2"); e("s_cbranch_scc1 L_loadB")
    srd(36, 12, 256)
    e(f"v_lshrrev_b32 v3, 3, v{L}"); e(f"v_and_b32 v4, 7, v{L}"); e("v_xor_b32 v4, v4, v3")
    e("v_lshlrev_b32 v4, 4, v4"); e("v_lshl_add_u32 v3, v3, 11, v4")
    e(f"v_lshlrev_b32 v5, 4, v{L}")
    e(f"v_lshlrev_b32 v6, 2, v{L}")
    e("s_lshl_b32 s45, s44, 13")
    e("s_lshl_b32 s48, s42, 1")
    e("s_lshl_b32 s46, s41, 7"); e("s_lshl_b32 s47, s44, 6"); e("s_add_u32 s46, s46, s47"); e("s_lshl_b32 s46, s46, 11")
    def issueA0(slot):
        e("s_and_b32 s49, s48, 15"); e("s_lshl_b32 s49, s49, 7"); e("s_add_u32 s49, s49, s46")
        for grp in range(2):
            e(f"s_add_u32 m0, s45, {slot*16384 + grp*4096}")
            if grp: e(f"s_add_u32 s49, s49, {16384+3072}")
            else: e("s_nop 0")
            for ii in range(4):
                e(f"buffer_load_dwordx4 v3, s[16:19], s49 offen offset:{ii*1024} lds")
                if ii < 3: e(f"s_add_u32 s49, s49, {16384-1024}")
        e("s_add_u32 s48, s48, 1")
    def issueA(slot):
        e("s_and_b32 s49, s48, 15"); e("s_lshl_b32 s49, s49, 14"); e("s_add_u32 s49, s49, s46")
        for grp in range(2):
            e(f"s_add_u32 m0, s45, {slot*16384 + grp*4096}")
            if grp: e("s_add_u32 s49, s49, 4096")
            else: e("s_nop 0")
            for ii in range(4):
                e(f"buffer_load_dwordx4 v5, s[24:27], s49 offen offset:{ii*1024} {LDF} lds")
        e("s_add_u32 s48, s48, 1")
    def stamp():
        if not STAMPS: return
        e("s_memrealtime s[54:55]"); e("s_memtime s[56:57]"); e("s_mov_b32 m0, s53"); e("s_waitcnt lgkmcnt(0)")
        e("v_writelane_b32 v20, s54, m0"); e("v_writelane_b32 v21, s56, m0"); e("s_add_u32 s53, s53, 1")
    e("s_mov_b32 s53, 0"); e("v_mov_b32 v20, 0"); e("v_mov_b32 v21, 0")
    stamp()
    PT = o.get('pt', 0)
    def pretouch(layer_sreg_or_const):
        if not PT: return
        e("s_lshl_b32 s47, s47, 23"); e("s_lshl_b32 s52, s41, 18"); e("s_add_u32 s47, s47, s52")
        n = min(64, 262144 // PT)
        if n < 64: e(f"s_mov_b64 exec, {hex((1 << n) - 1)}")
        e(f"buffer_load_dword v9, v10, s[24:27], s47 offen sc1")
        if n < 64: e("s_mov_b64 exec, -1")
    if PT:
        import math
        e(f"v_lshlrev_b32 v10, {int(math.log2(PT))}, v{L}")
    for slot in range(4): issueA0(slot)
    stamp()
    e("s_waitcnt vmcnt(24)")
    stamp()
    e("s_barrier")
    stamp()
    e("s_mov_b32 s47, 0"); pretouch(0)
    e("s_mov_b32 s47, 3")
    a.lab("L_a0loop")
    for slot in range(4):
        e("s_waitcnt vmcnt(16)"); e("s_barrier"); issueA0(slot)
    e("s_sub_u32 s47, s47, 1"); e("s_cmp_lg_u32 s47, 0"); e("s_cbranch_scc1 L_a0loop")
    def tailA():
        e("s_waitcnt vmcnt(16)"); e("s_barrier")
        e("s_waitcnt vmcnt(8)"); e("s_barrier")
        e("s_waitcnt vmcnt(0)"); e("s_barrier")
        e("s_barrier")
        stamp()
    tailA()
    e("s_mov_b32 s50, 1")
    a.lab("L_alayer")
    e(f"s_cmp_eq_u32 s50, {NL}"); e("s_cbranch_scc1 %s" % ("L_stamp" if STAMPS else "L_done"))
    e("s_barrier")
    stamp()
    e("s_barrier")
    stamp()
    e("s_cmp_lg_u32 s50, 1"); e("s_cbranch_scc1 L_noarr")
    e("s_lshl_b32 s47, s41, 2"); e("s_add_u32 s47, s47, 128"); e("v_mov_b32 v7, 0"); e(f"s_mov_b32 s51, {SPIN}")
    a.lab("L_arr")
    e("buffer_load_dword v8, v7, s[36:39], s47 offen sc1")
    e("s_waitcnt vmcnt(0)")
    e("v_readfirstlane_b32 s52, v8"); e("s_nop 3")
    e("s_cmp_ge_u32 s52, 8"); e("s_cbranch_scc1 L_noarr")
    e("s_sub_u32 s51, s51, 1"); e("s_cmp_lg_u32 s51, 0"); e("s_cbranch_scc1 L_arr")
    a.lab("L_noarr")
    e("s_lshl_b32 s47, s41, 8"); e(f"s_add_u32 s47, s47, {FLAG_OFF}"); e(f"s_mov_b32 s51, {SPIN}")
    e("s_mov_b32 exec_hi, 0")
    a.lab("L_poll")
    e("buffer_load_dword v8, v6, s[24:27], s47 offen sc1")
    e("s_waitcnt vmcnt(0)")
    e("v_cmp_gt_u32 vcc, s50, v8")
    e("s_cmp_eq_u64 vcc, 0"); e("s_cbranch_scc1 L_ready")
    e("s_sub_u32 s51, s51, 1"); e("s_cmp_lg_u32 s51, 0"); e("s_cbranch_scc1 L_poll")
    a.lab("L_ready")
    e("s_mov_b64 exec, -1")
    stamp()
    e("s_sub_u32 s46, s50, 1"); e("s_lshl_b32 s46, s46, 23"); e("s_lshl_b32 s47, s41, 18"); e("s_add_u32 s46, s46, s47")
    e("s_add_u32 s46, s46, s45")
    e("s_lshl_b32 s48, s42, 1"); e("s_add_u32 s48, s48, 2")
    if o.get('lat', 0):
        issueA(2); stamp(); e("s_waitcnt vmcnt(7)"); stamp(); e("s_waitcnt vmcnt(0)"); stamp(); issueA(3); e("s_waitcnt vmcnt(8)")
    else:
        issueA(2); issueA(3)
        e("s_waitcnt vmcnt(8)")
        stamp()
    e("s_barrier")
    issueA(0); issueA(1)
    e("s_mov_b32 s47, s50"); pretouch(0)
    for s in range(2, 12):
        e("s_waitcnt vmcnt(16)"); e("s_barrier"); issueA(s & 3)
    tailA()
    e("s_add_u32 s50, s50, 1")
    e("s_branch L_alayer")
    a.lab("L_loadB")
    e("s_sub_u32 s44, s44, 2")
    e(f"v_lshrrev_b32 v4, 4, v{L}"); e(f"v_and_b32 v5, 15, v{L}")
    e("v_lshlrev_b32 v6, 1, v4"); e("v_xor_b32 v5, v5, v6"); e("v_lshlrev_b32 v5, 4, v5")
    e("v_lshl_add_u32 v3, v4, 11, v5"); e("v_xor_b32 v7, 128, v3")
    e("s_lshl_b32 s45, s44, 13"); e(f"s_add_u32 s45, s45, {B_RING}")
    e("s_lshl_b32 s46, s44, 16"); e("s_lshl_b32 s43, s42, 8"); e("s_add_u32 s46, s46, s43")
    e("s_lshl_b32 s48, s42, 1")
    e("s_mov_b32 s50, 0")
    def issueB(slot):
        e("s_and_b32 s49, s48, 15"); e("s_lshl_b32 s49, s49, 17"); e("s_add_u32 s49, s49, s46")
        e("s_lshr_b32 s47, s50, 4"); e("s_lshl_b32 s47, s47, 21"); e("s_add_u32 s49, s49, s47")
        for grp in range(2):
            e(f"s_add_u32 m0, s45, {slot*16384 + grp*4096}")
            if grp: e(f"s_add_u32 s49, s49, {32768 - 3*7168}")
            else: e("s_nop 0")
            for ii in range(4):
                vr = 7 if ii in (1, 2) else 3
                e(f"buffer_load_dwordx4 v{vr}, s[20:23], s49 offen offset:{ii*1024} lds")
                if ii < 3: e("s_add_u32 s49, s49, 7168")
        e("s_add_u32 s48, s48, 1"); e("s_add_u32 s50, s50, 1")
    e("s_mov_b32 s53, 0"); e("v_mov_b32 v20, 0"); e("v_mov_b32 v21, 0")
    stamp()
    for slot in range(4): issueB(slot)
    stamp()
    e("s_waitcnt vmcnt(24)")
    stamp()
    e("s_barrier")
    e("s_mov_b32 s51, 0")
    a.lab("L_blayer")
    e("s_add_u32 s51, s51, 1")
    e(f"s_cmp_eq_u32 s51, {NL}"); e("s_cbranch_scc1 L_blast")
    e("s_mov_b32 s52, 4")
    a.lab("L_bloop")
    for slot in range(4):
        e("s_waitcnt vmcnt(16)"); e("s_barrier"); issueB(slot)
    e("s_sub_u32 s52, s52, 1"); e("s_cmp_lg_u32 s52, 0"); e("s_cbranch_scc1 L_bloop")
    e("s_barrier")
    e("s_branch L_blayer")
    a.lab("L_blast")
    e("s_mov_b32 s52, 3")
    a.lab("L_bloop2")
    for slot in range(4):
        e("s_waitcnt vmcnt(16)"); e("s_barrier"); issueB(slot)
    e("s_sub_u32 s52, s52, 1"); e("s_cmp_lg_u32 s52, 0"); e("s_cbranch_scc1 L_bloop2")
    e("s_waitcnt vmcnt(16)"); e("s_barrier")
    e("s_waitcnt vmcnt(8)"); e("s_barrier")
    e("s_waitcnt vmcnt(0)"); e("s_barrier")
    e("s_barrier")
    if STAMPS:
        e("s_branch L_stamp")
        a.lab("L_stamp")
        e("s_lshl_b32 s43, s2, 3"); e("s_add_u32 s43, s43, s40"); e("s_lshl_b32 s43, s43, 9")
        e(f"s_add_u32 s43, s43, {STAMP_OFF}")
        e(f"v_lshlrev_b32 v22, 2, v{L}")
        e("buffer_store_dword v20, v22, s[24:27], s43 offen")
        e("buffer_store_dword v21, v22, s[24:27], s43 offen offset:256")
        e("s_waitcnt vmcnt(0)")
    a.lab("L_done")
    a.lab("L_end")
    e("s_endpgm")
    a.raw('.section .rodata,"a"'); a.raw(".p2align 6"); a.raw(f".amdhsa_kernel {KN}")
    for s in ["next_free_vgpr 256", "next_free_sgpr 96", "accum_offset 256", "group_segment_fixed_size 0",
              "kernarg_size 48", "user_sgpr_count 2", "user_sgpr_kernarg_segment_ptr 1", "system_sgpr_workgroup_id_x 1"]:
        a.raw("  .amdhsa_" + s)
    a.raw(".end_amdhsa_kernel")
    return "\n".join(l for l in a.L if l != "@@STAMP@@") + "\n"

if __name__ == "__main__":
    out = sys.argv[1]; opts = {}
    for x in sys.argv[2:]:
        k, v = x.split("=")
        try: v = int(v)
        except: v = v.replace('+', ' ')
        opts[k] = v
    open(out, "w").write(gen(opts))
```

```python
import sys, math

KN = "standalone__dcn_v2_cross__recsys_kernel"

class Asm:
    def __init__(self):
        self.L = []; self.q = []; self.n = 0; self.wpos = {}
    def e(self, s): self.L.append("  " + s); self.n += 1
    def lab(self, s): self.L.append(s + ":")
    def raw(self, s): self.L.append(s)
    def lds(self, s, tag): self.e(s); self.q.append(tag)
    def need(self, *tags):
        idx = -1
        for t in tags:
            for i, x in enumerate(self.q):
                if x == t: idx = max(idx, i)
        if idx < 0: return
        n = len(self.q) - 1 - idx
        self.e(f"s_waitcnt lgkmcnt({min(n,15)})")
        self.q = self.q[idx + 1:]
    def drain(self):
        self.e("s_waitcnt lgkmcnt(0)"); self.q = []

ACC = 0; X0F = 64; XRES = 128; XF = 192; WP = 208; WQ = 224
VA = 240; VB = 242; XF2 = 246; VST = 250; VBIAS = 251; VLANE = 252; VPF = 252; VT = 253
def acc(nt, mt): return ACC + 16 * mt + 4 * nt
def x0f(nt, mt): return X0F + 16 * mt + 4 * nt
def xres(nt, mt): return XRES + 16 * mt + 4 * nt
def xf(b): return XF + 4 * b if b < 4 else XF2
def wf(s, nt): return (WP if s == 0 else WQ) + 4 * nt

A_RING = 0; B_RING = 0x10000; BIAS_LDS = 0x20000
FLAG_OFF = 48 << 20
STAMP_OFF = 200 << 20

def gen(o):
    NL = o.get('nl', 6); STAMPS = o.get('stamps', 0); DBG = o.get('dbg', 0)
    MINI = (STAMPS == 3)
    if MINI: STAMPS = 0
    MODE = o.get('mode', 'auto')
    LDF = o.get('ldf', 'sc1')
    SPIN = o.get('spin', 200000)
    PUBPOS = o.get('pubpos', 20)
    RATE = o.get('rate', 2); PF0 = o.get('pf0', 0); PKT = o.get('pkt', 1); DEFER = o.get('defer', 1); MRATE = o.get('mrate', 2)
    OUTF = o.get('outf', '')
    a = Asm(); e = a.e
    a.raw("; @launch grid=(256,1,1) block=(512,1,1) lds=163840")
    a.raw('.amdgcn_target "amdgcn-amd-amdhsa--gfx950"')
    a.raw(".text"); a.raw(f".globl {KN}"); a.raw(".p2align 8"); a.raw(f".type {KN},@function")
    a.lab(KN)
    e("s_cmp_ge_u32 s2, 256"); e("s_cbranch_scc1 L_end")
    e("s_load_dwordx4 s[4:7], s[0:1], 0")
    e("s_load_dwordx4 s[8:11], s[0:1], 16")
    e("s_load_dwordx4 s[12:15], s[0:1], 32")
    if STAMPS or DBG or MINI: e("s_memrealtime s[60:61]")
    e("v_lshrrev_b32 v1, 6, v0")
    e(f"v_and_b32 v{VLANE}, 63, v0")
    e("s_lshr_b32 s42, s2, 3")
    e("v_readfirstlane_b32 s40, v1")
    e("s_and_b32 s42, s42, 7")
    e("s_and_b32 s41, s2, 7")
    e("s_lshl_b32 s41, s41, 2")
    e("s_lshr_b32 s43, s2, 6")
    e("s_add_u32 s41, s41, s43")
    if o.get('mapb', 0):
        e("s_and_b32 s42, s2, 7"); e("s_lshr_b32 s41, s2, 3")
    STG = o.get('stg', 2)
    NC = o.get('nc', 3)
    if STG:
        e("s_and_b32 s38, s42, 3"); e("s_lshl_b32 s38, s38, 1"); e("s_add_u32 s38, s38, s41"); e("s_and_b32 s38, s38, 7")
        e("s_and_b32 s39, s41, 3"); e("s_lshr_b32 s43, s41, 2"); e("s_add_u32 s39, s39, s43")
        M = 8 - NC
        for _ in range(10 // M): e(f"s_cmp_ge_u32 s39, {M}"); e(f"s_cselect_b32 s43, {M}, 0"); e("s_sub_u32 s39, s39, s43")
    else:
        e("s_mov_b32 s38, 0"); e("s_mov_b32 s39, 0")
    e("s_mov_b32 s96, s38"); e("s_mov_b32 s97, s39")
    e("s_waitcnt lgkmcnt(0)")
    def kidx(dst, stage, first):
        if first:
            e(f"s_lshl_b32 {dst}, s96, 1"); e(f"s_add_u32 {dst}, {dst}, {stage}"); e(f"s_and_b32 {dst}, {dst}, 15")
        else:
            M = 8 - NC
            e(f"s_lshr_b32 s95, {stage}, 1")
            e("s_add_u32 s43, s95, s97"); e(f"s_sub_u32 s43, s43, {NC}")
            e(f"s_cmp_ge_u32 s43, {M}"); e(f"s_cselect_b32 {dst}, {M}, 0"); e(f"s_sub_u32 s43, s43, {dst}")
            e(f"s_add_u32 s43, s43, {NC}")
            e(f"s_cmp_lt_u32 s95, {NC}"); e("s_cselect_b32 s43, s95, s43")
            e("s_add_u32 s43, s43, s42"); e("s_and_b32 s43, s43, 7"); e("s_lshl_b32 s43, s43, 1")
            e(f"s_and_b32 {dst}, {stage}, 1"); e(f"s_add_u32 {dst}, {dst}, s43")
    def srd(d, p, n):
        e(f"s_mov_b32 s{d}, s{p}"); e(f"s_and_b32 s{d+1}, s{p+1}, 0xffff")
        e(f"s_mov_b32 s{d+2}, {n}"); e(f"s_mov_b32 s{d+3}, 0x00020000")
    L = VLANE
    e("s_cmp_ge_u32 s40, 6"); e("s_cbranch_scc1 L_loadB")
    e("s_cmp_ge_u32 s40, 4"); e("s_cbranch_scc1 L_loadA")

    srd(16, 4, 8 << 20); srd(24, 14, 256 << 20)
    srd(28, 10, 8 << 20); srd(32, 8, 6 * 1024 * 2); srd(36, 12, 256); srd(20, 6, 12 << 20)
    e("s_and_b32 s44, s40, 1")
    e("s_lshr_b32 s45, s40, 1")
    e("v_and_b32 v4, 127, v0"); e("v_lshrrev_b32 v5, 7, v0")
    e("s_lshl_b32 s47, s42, 8")
    e("v_lshlrev_b32 v6, 11, v5"); e("v_lshl_add_u32 v6, v4, 1, v6"); e("v_add_u32 v6, s47, v6")
    for i in range(3):
        e(f"buffer_load_ushort v{8+i}, v6, s[32:35], 0 offen")
        if i < 2: e("v_add_u32 v6, 4096, v6")
    e("s_lshl_b32 s51, s41, 8"); e("s_lshl_b32 s47, s42, 4"); e("s_add_u32 s51, s51, s47")
    e(f"s_add_u32 s51, s51, {FLAG_OFF}")
    e("s_getreg_b32 s54, hwreg(HW_REG_XCC_ID, 0, 3)")
    e("s_lshl_b32 s54, s54, 2")
    e("s_cmp_lg_u32 s40, 0"); e("s_cbranch_scc1 L_noreset")
    e(f"v_lshlrev_b32 v12, 2, v{L}"); e("v_mov_b32 v13, 0")
    e("s_mov_b64 exec, 0xf")
    e("buffer_store_dword v13, v12, s[24:27], s51 offen sc1")
    e("s_waitcnt vmcnt(0)")
    e("s_lshl_b32 s46, s41, 2"); e("s_add_u32 s46, s46, 128")
    e("s_lshl_b32 s47, 1, s54"); e("v_mov_b32 v13, s47")
    e("s_mov_b64 exec, 1")
    e("buffer_atomic_add v13, v12, s[36:39], s46 offen sc1")
    e("s_mov_b64 exec, -1")
    a.lab("L_noreset")
    e("s_lshl_b32 s47, s40, 2"); e("s_add_u32 s51, s51, s47")
    e(f"v_and_b32 v1, 15, v{L}"); e(f"v_lshrrev_b32 v2, 4, v{L}")
    e("v_lshlrev_b32 v3, 11, v1"); e(f"v_lshl_add_u32 v{VT}, v2, 3, v3")
    e("s_lshl_b32 s46, s41, 7"); e("s_lshl_b32 s47, s45, 6"); e("s_add_u32 s46, s46, s47"); e("s_lshl_b32 s46, s46, 11")
    e("s_lshl_b32 s47, s42, 8"); e("s_add_u32 s46, s46, s47")
    e("s_lshl_b32 s47, s44, 7"); e("s_add_u32 s48, s46, s47")
    e(f"v_bfe_u32 v15, v{L}, 2, 2")
    e("v_and_b32 v16, 1, v2"); e("v_lshl_or_b32 v16, v16, 2, v15")
    e("v_lshlrev_b32 v16, 5, v16")
    e("v_lshl_add_u32 v17, v2, 3, v15"); e("v_lshlrev_b32 v17, 8, v17")
    e(f"v_and_b32 v18, 3, v{L}"); e("v_lshl_add_u32 v17, v18, 3, v17"); e(f"v_add_u32 v17, {B_RING}, v17")
    e("s_lshl_b32 s46, s44, 7")
    for nt in range(4):
        e(f"s_add_u32 s47, s46, {nt*32}")
        e(f"v_xor_b32 v{VB+nt}, s47, v16"); e(f"v_add_u32 v{VB+nt}, v{VB+nt}, v17")
    e("v_and_b32 v4, 7, v1"); e("s_lshl_b32 s46, s45, 13")
    e("v_lshlrev_b32 v5, 7, v1"); e("v_add_u32 v5, s46, v5")
    for ks in range(2):
        e(f"v_add_u32 v6, {4*ks}, v2"); e("v_xor_b32 v6, v6, v4"); e(f"v_lshl_add_u32 v{VA+ks}, v6, 4, v5")
    e(f"v_lshlrev_b32 v{VST}, 4, v{L}")
    e("s_lshl_b32 s46, s44, 8"); e(f"s_add_u32 s46, s46, {BIAS_LDS}")
    e(f"v_lshl_add_u32 v{VBIAS}, v2, 4, s46")
    for i in range(64): e(f"v_mov_b32 v{XRES+i}, 0")
    e(f"v_and_b32 v19, 15, v{L}"); e("s_lshl_b32 s46, s42, 4"); e("v_add_u32 v19, s46, v19"); e("v_lshlrev_b32 v19, 11, v19")
    e(f"v_lshrrev_b32 v20, 4, v{L}"); e("s_lshl_b32 s46, s40, 2"); e("v_add_u32 v20, s46, v20"); e("v_lshl_add_u32 v19, v20, 7, v19")
    e(f"v_lshrrev_b32 v20, 1, v{L}")
    e("s_and_b32 s46, s41, 3"); e("s_lshl_b32 s46, s46, 5"); e("v_add_u32 v20, s46, v20"); e("v_lshlrev_b32 v20, 11, v20")
    e(f"v_and_b32 v21, 1, v{L}"); e("v_lshl_add_u32 v20, v21, 7, v20"); e("s_lshl_b32 s46, s42, 8"); e("v_add_u32 v20, s46, v20")
    e("s_waitcnt vmcnt(0)")
    e(f"v_mov_b32 v{VPF}, v20")
    if PF0:
        e("s_lshl_b32 s46, s41, 18"); e(f"buffer_load_dword v{VT+2}, v19, s[16:19], s46 offen")
        e("s_lshl_b32 s46, s40, 18"); e(f"buffer_load_dword v{VT+2}, v{VPF}, s[20:23], s46 offen")
    e(f"v_lshlrev_b32 v7, 2, v0"); e(f"v_add_u32 v7, {BIAS_LDS}, v7")
    for i in range(3): e(f"v_lshlrev_b32 v{8+i}, 16, v{8+i}")
    e("v_cmp_gt_u32 vcc, 128, v0"); e("v_add_f32 v11, 1.0, v8"); e("s_nop 0"); e("v_cndmask_b32 v8, v8, v11, vcc")
    for i in range(3): e(f"ds_write_b32 v7, v{8+i} offset:{i*1024}")
    e("s_waitcnt lgkmcnt(0)")
    e("s_barrier")
    if STAMPS or DBG or MINI: e("s_memrealtime s[62:63]")
    e("s_mov_b32 s49, 0")
    e("s_mov_b32 s55, 0")
    e("s_mov_b32 s58, 0"); e("s_mov_b32 s59, 1")
    e("s_sub_u32 s57, s42, s96"); e("s_and_b32 s57, s57, 7"); e("s_lshl_b32 s57, s57, 1"); e("s_add_u32 s57, s57, s44")
    def rd_x(b, mt, slot, ks):
        a.lds(f"ds_read_b128 v[{xf(b)}:{xf(b)+3}], v{VA+ks} offset:{slot*16384 + mt*2048}", ('x', b))
    def rd_w(s, nt, rd, slot, ks):
        r = wf(s, nt) + 2 * rd
        a.lds(f"ds_read_b64_tr_b16 v[{r}:{r+1}], v{VB+nt} offset:{slot*16384 + ks*8192 + rd*1024}", ('w', s, nt, rd))
    def rd_bias(nt, mt):
        a.lds(f"ds_read_b128 v[{acc(nt,mt)}:{acc(nt,mt)+3}], v{VBIAS} offset:{nt*64}", ('b', nt, mt))
    def mfma(nt, mt, s, b):
        a.need(('x', b), ('w', s, nt, 0), ('w', s, nt, 1), ('b', nt, mt))
        c = acc(nt, mt)
        e(f"v_mfma_f32_16x16x32_bf16 v[{c}:{c+3}], v[{wf(s,nt)}:{wf(s,nt)+3}], v[{xf(b)}:{xf(b)+3}], v[{c}:{c+3}]")
        a.wpos[(nt, mt)] = a.n
    for mt in range(4):
        for nt in range(4): rd_bias(nt, mt)
    a.drain()
    for nt in range(4):
        rd_w(0, nt, 0, 0, 0); rd_w(0, nt, 1, 0, 0)
    for mt in range(4): rd_x(mt, mt, 0, 0)
    a.drain()
    WL = [(nt, rd) for nt in range(4) for rd in range(2)]
    assert o.get('barpos', 1) <= 3
    def publish():
        e("s_cmp_lg_u32 s58, 0"); e("s_cbranch_scc1 L_pub"); a.lab("L_pubret")
    def publish_block():
        a.lab("L_pub")
        e("s_mov_b32 s58, 0")
        if STAMPS: e("s_memtime s[72:73]")
        e("s_waitcnt vmcnt(0)")
        if STAMPS: e("s_memtime s[74:75]")
        e(f"v_mov_b32 v{VT+1}, s49"); e(f"v_mov_b32 v{VT+2}, 0")
        e("s_mov_b64 exec, 1")
        if MODE == 'auto':
            e("s_cmp_eq_u32 s55, 0"); e("s_cbranch_scc1 L_pubslow")
            e(f"buffer_store_dword v{VT+1}, v{VT+2}, s[24:27], s51 offen")
            e("s_mov_b64 exec, -1"); e("s_branch L_pubret")
            a.lab("L_pubslow")
            e(f"buffer_store_dword v{VT+1}, v{VT+2}, s[24:27], s51 offen sc1")
        else:
            e(f"buffer_store_dword v{VT+1}, v{VT+2}, s[24:27], s51 offen {'sc1' if MODE=='slow' else ''}")
        e("s_mov_b64 exec, -1"); e("s_branch L_pubret")
    PF = o.get('pf', 1)
    def prefetch_hook():
        if not PF: return
        e(f"s_cmp_eq_u32 s50, {o.get('pfit', 1)}"); e("s_cbranch_scc1 L_pf"); a.lab("L_pfret")
    def prefetch_block():
        if not PF: return
        a.lab("L_pf")
        e(f"s_cmp_ge_u32 s40, {NC}"); e("s_cbranch_scc1 L_pfret")
        e("s_add_u32 s56, s49, 1"); e(f"s_cmp_ge_u32 s56, {NL}"); e("s_cbranch_scc1 L_pfret")
        e("s_add_u32 s46, s42, s40"); e("s_and_b32 s46, s46, 7"); e("s_lshl_b32 s46, s46, 18")
        e("s_lshl_b32 s56, s56, 21"); e("s_add_u32 s46, s46, s56")
        e(f"buffer_load_dword v{VT+2}, v{VPF}, s[20:23], s46 offen")
        e("s_branch L_pfret")
    BARPOS = o.get('barpos', 1); XD = o.get('xd', 1)
    def kstep0(slot):
        for mt in range(4):
            for nt in range(4):
                mfma(nt, mt, 0, mt)
                i = mt * 4 + nt
                if slot == o.get('pfslot', 2) and i == 12: prefetch_hook()
                if i == 14:
                    e(f"s_cmp_eq_u32 s57, {slot}"); e(f"s_cbranch_scc1 L_x0rd{slot}"); a.lab(f"L_x0ret{slot}")
                if i < 8: rd_w(1, WL[i][0], WL[i][1], slot, 1)
                if i == 8: rd_x(4, 3, slot, 1)
                for m2 in range(3):
                    if i == 4 * m2 + 3 + XD: rd_x(m2, m2, slot, 1)
                if slot == 0 and i == PUBPOS: publish()
    def kstep1(slot, prelast=False):
        ns = (slot + 1) & 3
        nxt = [(0, 0), (1, 0), (2, 0), (3, 0)] if not prelast else [(0, 0), (1, 0), (0, 1), (2, 0)]
        for mt in range(4):
            for nt in range(4):
                mfma(nt, mt, 1, mt if mt < 3 else 4)
                i = mt * 4 + nt
                if slot == 0 and 16 + i == PUBPOS: publish()
                if i == BARPOS:
                    a.drain(); e("s_barrier")
                    if STAMPS == 2 and not prelast: e(f"s_memtime s[{90+2*slot}:{91+2*slot}]")
                if BARPOS <= i < BARPOS + 8: rd_w(0, WL[i-BARPOS][0], WL[i-BARPOS][1], ns, 0)
                if i == BARPOS + 8: rd_x(3, nxt[3][0], ns, nxt[3][1])
                for m2 in range(3):
                    if i == 4 * m2 + 3 + XD: rd_x(m2, nxt[m2][0], ns, nxt[m2][1])
    GORD = [(0, 0), (1, 0), (0, 1), (2, 0), (1, 1), (3, 0), (2, 1), (3, 1)]
    def fillers(kind):
        F = []; D = []
        for mt in range(4):
            for ks in range(2):
                o_ = acc(2 * ks, mt)
                for nt in (2 * ks, 2 * ks + 1):
                    c = acc(nt, mt); x = xres(nt, mt); z = x0f(nt, mt)
                    for h in range(2):
                        F.append((mt, 'f', (nt, mt), (c + 2*h, x + 2*h, z + 2*h)))
                for h, nt in enumerate((2 * ks, 2 * ks + 1)):
                    x = xres(nt, mt)
                    F.append((mt, 'v', None, lambda x=x, d=o_ + 2*h: e(f"v_cvt_pk_bf16_f32 v{d}, v{x}, v{x+1}")))
                    F.append((mt, 'v', None, lambda x=x, d=o_ + 2*h + 1: e(f"v_cvt_pk_bf16_f32 v{d}, v{x+2}, v{x+3}")))
                if kind == 'final':
                    def sw(o_=o_):
                        e("s_nop 1")
                        e(f"v_permlane16_swap_b32 v{o_}, v{o_+2}"); e(f"v_permlane16_swap_b32 v{o_+1}, v{o_+3}")
                    F.append((mt, 'v', None, sw))
                    so = ["s46", "s53", "s56", "s57"][mt]
                    F.append((mt, 'm', None, lambda o_=o_, so=so, ks=ks: e(f"buffer_store_dwordx4 v[{o_}:{o_+3}], v{VT}, s[28:31], {so} offen offset:{ks*64} {OUTF}")))
                else:
                    so = "s46" if mt < 2 else "s53"
                    fl = 'sc1' if kind == 'slow' else ''
                    F.append((mt, 'm', None, lambda o_=o_, so=so, ks=ks, mt=mt, fl=fl: e(f"buffer_store_dwordx4 v[{o_}:{o_+3}], v{VST}, s[24:27], {so} offen offset:{((mt&1)*2+ks)*1024} {fl}")))
                    tgt = D if DEFER else F
                    tgt.append((mt if not DEFER else 3, 'm', None, lambda o_=o_, ks=ks, mt=mt: a.lds(f"ds_write_b128 v{VT+1}, v[{o_}:{o_+3}] offset:{mt*2048+ks*1024}", ('st', mt, ks))))
                    tgt.append((mt if not DEFER else 3, 'm', None, lambda ks=ks, mt=mt: rd_bias(2 * ks, mt)))
                    tgt.append((mt if not DEFER else 3, 'm', None, lambda ks=ks, mt=mt: rd_bias(2 * ks + 1, mt)))
        F += D
        return F
    def laststage(kind):
        F = fillers(kind); done = set()
        def pump(maxv, maxm, final=False):
            nv = nm = 0
            while F:
                g, t, tile, fn = F[0]
                if g not in done: break
                if tile is not None:
                    dist = a.n - a.wpos[tile]
                    if dist < 9:
                        if not final: break
                        e(f"s_nop {8 - dist}")
                cost = 2 if (t == 'f' and not final) else 1
                if t in 'vf' and nv + cost > maxv: break
                if t == 'm' and nm >= maxm: break
                F.pop(0)
                if t == 'f':
                    c, x, z = fn
                    if final and PKT: e(f"v_pk_fma_f32 v[{x}:{x+1}], v[{z}:{z+1}], v[{c}:{c+1}], v[{x}:{x+1}]")
                    else:
                        e(f"v_fma_f32 v{x}, v{z}, v{c}, v{x}"); e(f"v_fma_f32 v{x+1}, v{z+1}, v{c+1}, v{x+1}")
                else: fn()
                if t in 'vf': nv += cost
                else: nm += 1
        for gi, (mt, ks) in enumerate(GORD):
            for nt in range(4):
                mfma(nt, mt, ks, gi % 4)
                i = gi * 4 + nt
                if i < 4:
                    rd_w(1, WL[2*i][0], WL[2*i][1], 3, 1); rd_w(1, WL[2*i+1][0], WL[2*i+1][1], 3, 1)
                for g2 in range(4):
                    if i == 4 * g2 + 3 + XD: rd_x(g2, GORD[g2 + 4][0], 3, GORD[g2 + 4][1])
                if gi == 5 and nt == 3:
                    a.drain(); e("s_barrier")
                if gi == 6 and kind != 'final':
                    rd_w(0, WL[2*nt][0], WL[2*nt][1], 0, 0); rd_w(0, WL[2*nt+1][0], WL[2*nt+1][1], 0, 0)
                pump(RATE, MRATE)
            if ks == 1: done.add(mt)
        if STAMPS and kind != 'final': e("s_memtime s[76:77]")
        if STAMPS and kind == 'final': e("s_memtime s[88:89]")
        while F: pump(99, 99, final=True)
    a.raw(".p2align 6")
    a.lab("L_layer")
    e("s_mov_b32 s50, 0")
    a.lab("L_iter")
    if STAMPS == 2:
        e("s_cmp_lg_u32 s50, 1"); e("s_cbranch_scc1 L_nosave")
        e("s_waitcnt lgkmcnt(0)")
        for k in range(4): e(f"s_mov_b32 s{98+k}, s{90+2*k}")
        a.lab("L_nosave")
    if STAMPS:
        e("s_mov_b64 s[86:87], s[84:85]"); e("s_mov_b64 s[84:85], s[82:83]"); e("s_mov_b64 s[82:83], s[80:81]"); e("s_mov_b64 s[80:81], s[78:79]"); e("s_memtime s[78:79]")
    e("s_cmp_lg_u32 s59, 0"); e("s_cbranch_scc1 L_x0special")
    a.lab("L_nox0")
    keepL = a.L; keepn = a.n; a.L = []; a.q = []
    _pp = PUBPOS; PUBPOS = -1
    kstep1(3); q0 = list(a.q); a.L = keepL; a.n = keepn
    PUBPOS = _pp
    for slot in range(4):
        kstep0(slot)
        if slot == 2:
            e("s_cmp_eq_u32 s50, 3"); e("s_cbranch_scc1 L_tail")
            qsave = list(a.q)
        kstep1(slot)
    assert a.q == q0, (a.q, q0)
    e("s_add_u32 s50, s50, 1"); e("s_sub_u32 s57, s57, 4")
    e("s_branch L_iter")
    a.lab("L_tail")
    a.q = qsave
    e("s_add_u32 s52, s49, 1")
    e("s_lshl_b32 s46, s49, 23"); e("s_lshl_b32 s47, s41, 18"); e("s_add_u32 s46, s46, s47")
    e("s_lshl_b32 s47, s42, 15"); e("s_add_u32 s46, s46, s47")
    e("s_lshl_b32 s47, s44, 14"); e("s_add_u32 s46, s46, s47")
    e(f"v_add_u32 v{VT+1}, s47, v{VST}")
    e("s_lshl_b32 s47, s45, 13"); e("s_add_u32 s46, s46, s47")
    e(f"v_add_u32 v{VT+1}, s47, v{VT+1}")
    e("s_add_u32 s53, s46, 4096")
    e(f"v_add_u32 v{VBIAS}, 512, v{VBIAS}")
    kstep1(2, prelast=True)
    e("s_cmp_eq_u32 s57, 3"); e("s_cbranch_scc1 L_x0rdT"); a.lab("L_x0retT")
    qtail = list(a.q)
    e(f"s_cmp_eq_u32 s52, {NL}"); e("s_cbranch_scc1 L_final")
    def after_epilogue(kind):
        e("s_lshl_b32 s47, s45, 13")
        e(f"v_add_u32 v{VA}, s47, v{VST}"); e(f"v_add_u32 v{VA+1}, 1024, v{VA}")
        if STAMPS: e("s_memtime s[68:69]")
        if PUBPOS == -2:
            if STAMPS: e("s_memtime s[72:73]")
            e("s_waitcnt vmcnt(0)")
            if STAMPS: e("s_memtime s[74:75]")
            e(f"v_mov_b32 v{VT+1}, s52"); e(f"v_mov_b32 v{VT+2}, 0")
            e("s_mov_b64 exec, 1")
            e(f"buffer_store_dword v{VT+1}, v{VT+2}, s[24:27], s51 offen {'sc1' if kind == 'slow' else ''}")
            e("s_mov_b64 exec, -1")
        a.drain(); e("s_barrier")
        if STAMPS: e("s_memtime s[70:71]")
        for mt in range(4): rd_x(mt, mt, 0, 0)
        e("s_mov_b32 s49, s52"); e("s_mov_b32 s58, 1"); e("s_mov_b32 s59, 0"); e("s_mov_b32 s57, 100")
        a.drain()
        e("s_branch L_layer")
    if MODE == 'auto':
        e("s_cmp_eq_u32 s55, 0"); e("s_cbranch_scc1 L_tailslow")
    if MODE in ('auto', 'fast'):
        a.q = list(qtail); laststage('fast'); after_epilogue('fast')
    if MODE in ('auto', 'slow'):
        a.lab("L_tailslow")
        a.q = list(qtail); laststage('slow'); after_epilogue('slow')
    a.lab("L_final")
    a.q = list(qtail)
    e(f"v_lshrrev_b32 v{L}, 4, v{VST}")
    e(f"v_and_b32 v{VT+1}, 15, v{L}"); e(f"v_lshlrev_b32 v{VT}, 11, v{VT+1}")
    e(f"v_bfe_u32 v{VT+1}, v{L}, 4, 1"); e(f"v_lshl_add_u32 v{VT}, v{VT+1}, 5, v{VT}")
    e(f"v_lshrrev_b32 v{VT+1}, 5, v{L}"); e(f"v_lshl_add_u32 v{VT}, v{VT+1}, 4, v{VT}")
    e("s_mov_b32 s46, s48"); e("s_add_u32 s53, s48, 32768"); e("s_add_u32 s56, s48, 65536"); e("s_add_u32 s57, s48, 98304")
    laststage('final')
    e("s_waitcnt vmcnt(0)")
    if DBG:
        e("s_memrealtime s[64:65]"); e("s_waitcnt lgkmcnt(0)")
        e("s_not_b32 s66, s60")
        e("v_mov_b32 v20, s66"); e("v_writelane_b32 v20, s60, 1"); e("v_writelane_b32 v20, s62, 2"); e("v_writelane_b32 v20, s64, 3")
        e("v_writelane_b32 v20, s55, 4")
        e(f"v_lshlrev_b32 v22, 2, v{L}")
        e("s_cmp_lg_u32 s40, 0"); e("s_cbranch_scc1 L_done")
        e("s_mov_b64 exec, 0x1f")
        e("buffer_atomic_umax v20, v22, s[36:39], 0 offen sc1")
        e("s_mov_b64 exec, -1")
    if MINI:
        e("s_memrealtime s[64:65]"); e("s_waitcnt lgkmcnt(0)")
        e("v_mov_b32 v20, s60"); e("v_writelane_b32 v20, s62, 1"); e("v_writelane_b32 v20, s64, 2")
        e("s_lshl_b32 s43, s2, 3"); e("s_add_u32 s43, s43, s40"); e("s_lshl_b32 s43, s43, 9"); e(f"s_add_u32 s43, s43, {STAMP_OFF}")
        e(f"v_lshlrev_b32 v22, 2, v{L}"); e("s_mov_b64 exec, 7")
        e("buffer_store_dword v20, v22, s[24:27], s43 offen")
    if STAMPS:
        e("s_memrealtime s[64:65]"); e("s_memtime s[66:67]"); e("s_waitcnt lgkmcnt(0)")
        e("v_mov_b32 v20, s60"); e("v_writelane_b32 v20, s62, 1"); e("v_writelane_b32 v20, s64, 2"); e("v_writelane_b32 v20, s55, 3")
        for i, r in enumerate((68, 70, 72, 74, 76, 78, 80, 82, 84, 86, 88, 98, 99, 100, 101)): e(f"v_writelane_b32 v20, s{r}, {4+i}")
        e("v_mov_b32 v21, s66")
        e("s_branch L_stamp")
    e("s_branch L_done")
    if PUBPOS >= 0: publish_block()
    prefetch_block()
    for slot, nm in ((0, '0'), (1, '1'), (2, '2'), (3, '3'), (3, 'T')):
        a.lab(f"L_x0rd{nm}")
        e(f"v_lshrrev_b32 v96, 4, v{VST}")
        e("v_and_b32 v97, 15, v96"); e("v_lshrrev_b32 v98, 4, v96")
        e("v_and_b32 v99, 7, v97"); e("v_lshrrev_b32 v100, 1, v98")
        e("s_lshl_b32 s47, s45, 13"); e(f"s_add_u32 s47, s47, {slot*16384}")
        e("v_lshlrev_b32 v101, 7, v97"); e("v_add_u32 v101, s47, v101")
        e("v_and_b32 v98, 1, v98"); e("v_lshl_add_u32 v101, v98, 3, v101")
        for nt in range(4):
            e(f"v_add_u32 v102, {2*nt}, v100"); e("v_xor_b32 v102, v102, v99"); e(f"v_lshl_add_u32 v{64+nt}, v102, 4, v101")
        for mt in range(4):
            for nt in range(4):
                r = 96 + 8 * mt + 2 * nt
                e(f"ds_read_b64 v[{r}:{r+1}], v{64+nt} offset:{mt*2048}")
        e("s_waitcnt lgkmcnt(0)")
        for t in range(16):
            r = 96 + 2 * t; d = X0F + 4 * t
            e(f"v_lshlrev_b32 v{d}, 16, v{r}"); e(f"v_and_b32 v{d+1}, 0xffff0000, v{r}")
            e(f"v_lshlrev_b32 v{d+2}, 16, v{r+1}"); e(f"v_and_b32 v{d+3}, 0xffff0000, v{r+1}")
        e(f"s_branch L_x0ret{nm}")
    a.lab("L_x0special")
    if MODE == 'auto':
        e("s_lshl_b32 s47, s41, 2"); e("s_add_u32 s47, s47, 128")
        e("s_cmp_eq_u32 s50, 3"); e("s_cbranch_scc1 L_modechk")
        e("s_cmp_lg_u32 s50, 2"); e("s_cbranch_scc1 L_nox0")
        e(f"v_mov_b32 v{VT+1}, 0"); e(f"buffer_load_dword v{VT+1}, v{VT+1}, s[36:39], s47 offen sc1")
        e("s_branch L_nox0")
        a.lab("L_modechk")
        e(f"s_mov_b32 s56, {SPIN}")
        a.lab("L_carr")
        e("s_waitcnt vmcnt(0)")
        e(f"v_readfirstlane_b32 s52, v{VT+1}"); e("s_nop 3")
        e("s_and_b32 s53, s52, 0x0f0f0f0f"); e("s_lshr_b32 s46, s52, 4"); e("s_and_b32 s46, s46, 0x0f0f0f0f")
        e("s_add_u32 s53, s53, s46"); e("s_mul_i32 s53, s53, 0x01010101"); e("s_lshr_b32 s53, s53, 24")
        e("s_cmp_ge_u32 s53, 8"); e("s_cbranch_scc1 L_carrok")
        e("s_cmp_eq_u32 s56, 0"); e("s_cbranch_scc1 L_carrok")
        e("s_sub_u32 s56, s56, 1")
        e(f"v_mov_b32 v{VT+1}, 0"); e(f"buffer_load_dword v{VT+1}, v{VT+1}, s[36:39], s47 offen sc1")
        e("s_branch L_carr")
        a.lab("L_carrok")
        e("s_lshl_b32 s53, 8, s54"); e("s_cmp_eq_u32 s52, s53"); e("s_cselect_b32 s55, 1, 0")
    e("s_branch L_nox0")

    def stamp():
        if STAMPS != 1: return
        e("s_memrealtime s[54:55]"); e("s_memtime s[56:57]"); e("s_mov_b32 m0, s53"); e("s_waitcnt lgkmcnt(0)")
        e("v_writelane_b32 v20, s54, m0"); e("v_writelane_b32 v21, s56, m0"); e("s_add_u32 s53, s53, 1")
    a.lab("L_loadA")
    srd(16, 4, 8 << 20)
    e("s_sub_u32 s44, s40, 4")
    e(f"v_lshrrev_b32 v3, 3, v{L}"); e(f"v_and_b32 v4, 7, v{L}"); e("v_xor_b32 v4, v4, v3")
    e("v_lshlrev_b32 v4, 4, v4"); e("v_lshl_add_u32 v3, v3, 11, v4")
    e("s_lshl_b32 s45, s44, 13")
    e("s_mov_b32 s48, 0")
    e("s_lshl_b32 s46, s41, 7"); e("s_lshl_b32 s47, s44, 6"); e("s_add_u32 s46, s46, s47"); e("s_lshl_b32 s46, s46, 11")
    if STAMPS: e("s_mov_b32 s53, 0"); e("v_mov_b32 v20, 0"); e("v_mov_b32 v21, 0")
    stamp()
    def issueA0(slot):
        kidx("s94", "s48", True)
        e("s_lshl_b32 s49, s94, 7"); e("s_add_u32 s49, s49, s46")
        for grp in range(2):
            e(f"s_add_u32 m0, s45, {slot*16384 + grp*4096}")
            if grp: e(f"s_add_u32 s49, s49, {16384+3072}")
            else: e("s_add_u32 s48, s48, 1")
            for ii in range(4):
                e(f"buffer_load_dwordx4 v3, s[16:19], s49 offen offset:{ii*1024} lds")
                if ii < 3: e(f"s_add_u32 s49, s49, {16384-1024}")
    def issueA(slot, have_idx=False):
        if not have_idx: kidx("s94", "s48", False)
        e("s_lshl_b32 s49, s94, 14"); e("s_add_u32 s49, s49, s46")
        for grp in range(2):
            e(f"s_add_u32 m0, s45, {slot*16384 + grp*4096}")
            if grp: e("s_add_u32 s49, s49, 4096")
            else: e("s_add_u32 s48, s48, 1")
            for ii in range(4):
                e(f"buffer_load_dwordx4 v5, s[24:27], s49 offen offset:{ii*1024} {LDF} lds")
    issueA0(0); issueA0(1)
    srd(24, 14, 256 << 20); srd(36, 12, 256)
    e(f"v_lshlrev_b32 v5, 4, v{L}"); e(f"v_lshlrev_b32 v6, 2, v{L}"); e("v_mov_b32 v8, 0")
    e("s_waitcnt vmcnt(8)")
    stamp()
    e("s_barrier")
    issueA0(2); issueA0(3)
    e("s_mov_b32 s47, 3")
    a.lab("L_a0loop")
    for slot in range(4):
        e("s_waitcnt vmcnt(16)"); e("s_barrier"); issueA0(slot)
    e("s_sub_u32 s47, s47, 1"); e("s_cmp_lg_u32 s47, 0"); e("s_cbranch_scc1 L_a0loop")
    def tailA(first=False):
        e("s_waitcnt vmcnt(16)"); e("s_barrier")
        e("s_waitcnt vmcnt(8)"); e("s_barrier")
        if first:
            e("s_lshl_b32 s47, s41, 2"); e("s_add_u32 s47, s47, 128"); e("v_mov_b32 v7, 0"); e(f"s_mov_b32 s51, {SPIN}")
            a.lab("L_arr")
            e("buffer_load_dword v9, v7, s[36:39], s47 offen sc1")
            e("s_waitcnt vmcnt(0)")
            e("v_readfirstlane_b32 s52, v9"); e("s_nop 3")
            e("s_and_b32 s43, s52, 0x0f0f0f0f"); e("s_lshr_b32 s52, s52, 4"); e("s_and_b32 s52, s52, 0x0f0f0f0f")
            e("s_add_u32 s52, s52, s43"); e("s_mul_i32 s52, s52, 0x01010101"); e("s_lshr_b32 s52, s52, 24")
            e("s_cmp_ge_u32 s52, 8"); e("s_cbranch_scc1 L_noarr")
            e("s_sub_u32 s51, s51, 1"); e("s_cmp_lg_u32 s51, 0"); e("s_cbranch_scc1 L_arr")
            a.lab("L_noarr")
        e("s_waitcnt vmcnt(0)"); e("s_barrier")
        e("s_barrier")
        stamp()
    tailA(first=True)
    e("s_mov_b32 s50, 1")
    if STAMPS == 2: e("s_mov_b32 s76, 0"); e("s_mov_b32 s77, 0")
    a.lab("L_alayer")
    e(f"s_cmp_eq_u32 s50, {NL}"); e("s_cbranch_scc1 %s" % (("L_stampA" if STAMPS == 2 else "L_stamp") if STAMPS else "L_done"))
    e("s_barrier")
    def lst(k):
        if STAMPS == 2: e(f"s_memtime s[{60+2*k}:{61+2*k}]")
    lst(0)
    stamp()
    EARLY = o.get('early', 1) and o.get('pm', 1) and o.get('pp', 4) > 1
    e("s_lshl_b32 s59, s41, 8"); e(f"s_add_u32 s59, s59, {FLAG_OFF}")
    if EARLY:
        e("s_mov_b32 exec_hi, 0")
        for k in range(o.get('pp', 4)):
            e(f"buffer_load_dword v{12+k}, v6, s[24:27], s59 offen sc1")
            if k < o.get('pp', 4) - 1: e(f"s_sleep {o.get('psleep', 2)}")
        e("s_mov_b64 exec, -1")
    lst(1)
    e("s_barrier")
    lst(2)

    PM = o.get('pm', 1)
    e(f"s_mov_b32 s51, {SPIN}")
    e("s_sub_u32 s46, s50, 1"); e("s_lshl_b32 s46, s46, 23"); e("s_lshl_b32 s47, s41, 18"); e("s_add_u32 s46, s46, s47")
    e("s_add_u32 s46, s46, s45")
    e("s_mov_b32 s48, 2")
    cnt = [0]
    def ensure():
        k = cnt[0]; cnt[0] += 1
        kidx("s94", "s48", False)
        e("s_and_b32 s43, s94, 14"); e("s_lshl_b32 s43, s43, 1"); e("s_and_b32 s47, s94, 1"); e("s_add_u32 s43, s43, s47")
        e("s_lshl_b32 s47, s44, 1"); e("s_add_u32 s43, s43, s47")
        a.lab(f"L_chk{k}")
        e("v_readlane_b32 s52, v8, s43"); e("s_nop 1")
        e("s_cmp_ge_u32 s52, s50"); e(f"s_cbranch_scc1 L_ok{k}")
        e("s_cmp_eq_u32 s51, 0"); e(f"s_cbranch_scc1 L_ok{k}")
        e("s_mov_b32 exec_hi, 0")
        e("buffer_load_dword v8, v6, s[24:27], s59 offen sc1")
        if STAMPS == 2: e("s_add_u32 s77, s77, 1")
        e("s_sub_u32 s51, s51, 1")
        e("s_waitcnt vmcnt(0)")
        e("s_mov_b64 exec, -1")
        e(f"s_branch L_chk{k}")
        a.lab(f"L_ok{k}")
    if not PM:
        e("s_mov_b32 exec_hi, 0")
        a.lab("L_poll")
        e("buffer_load_dword v8, v6, s[24:27], s59 offen sc1")
        e("s_waitcnt vmcnt(0)")
        e("v_cmp_gt_u32 vcc, s50, v8")
        e("s_cmp_eq_u64 vcc, 0"); e("s_cbranch_scc1 L_ready")
        e("s_sub_u32 s51, s51, 1"); e("s_cmp_lg_u32 s51, 0"); e("s_cbranch_scc1 L_poll")
        a.lab("L_ready")
        e("s_mov_b64 exec, -1")
    def iss(slot):
        if PM: ensure()
        issueA(slot, have_idx=bool(PM))
    PP = o.get('pp', 4)
    def lane_of_stage():
        kidx("s94", "s48", False)
        e("s_and_b32 s43, s94, 14"); e("s_lshl_b32 s43, s43, 1"); e("s_and_b32 s47, s94, 1"); e("s_add_u32 s43, s43, s47")
        e("s_lshl_b32 s47, s44, 1"); e("s_add_u32 s43, s43, s47")
    if PM and PP > 1:
        lane_of_stage()
        e("s_mov_b32 exec_hi, 0")
        if not EARLY:
            for k in range(PP):
                e(f"buffer_load_dword v{12+k}, v6, s[24:27], s59 offen sc1")
                if k < PP - 1: e(f"s_sleep {o.get('psleep', 2)}")
        a.lab("L_pp")
        for k in range(PP):
            e(f"s_waitcnt vmcnt({PP-1})")
            e(f"v_readlane_b32 s52, v{12+k}, s43"); e("s_nop 1")
            e("s_cmp_ge_u32 s52, s50"); e(f"s_cbranch_scc1 L_ppok{k}")
            e(f"buffer_load_dword v{12+k}, v6, s[24:27], s59 offen sc1")
        e("s_cmp_eq_u32 s51, 0"); e("s_cbranch_scc1 L_ppok0")
        e("s_sub_u32 s51, s51, 1"); e("s_branch L_pp")
        for k in range(PP):
            a.lab(f"L_ppok{k}")
            e(f"v_mov_b32 v8, v{12+k}")
            if k < PP - 1: e("s_branch L_ppdone")
        a.lab("L_ppdone")
        e("s_mov_b64 exec, -1")
    elif PM: ensure()
    stamp()
    lst(3)
    issueA(2, have_idx=bool(PM))
    lst(4)
    if PM:
        lane_of_stage()
        e("v_readlane_b32 s52, v8, s43"); e("s_nop 1")
        e("s_cmp_ge_u32 s52, s50"); e("s_cbranch_scc0 L_a3late")
        issueA(3, have_idx=True)
        e("s_waitcnt vmcnt(8)")
        lst(5)
        stamp()
        e("s_barrier")
        lst(6)
        e("s_branch L_a3done")
        a.lab("L_a3late")
        if STAMPS == 2: e("s_add_u32 s76, s76, 1")
        e("s_waitcnt vmcnt(0)")
        lst(5)
        stamp() if False else None
        if STAMPS == 1: e("s_add_u32 s53, s53, 1")
        e("s_barrier")
        iss(3)
        a.lab("L_a3done")
    else:
        issueA(3)
        e("s_waitcnt vmcnt(8)")
        stamp()
        e("s_barrier")
    iss(0); iss(1)
    for s__ in range(2, 12):
        e("s_waitcnt vmcnt(16)"); e("s_barrier"); iss(s__ & 3)
    tailA()
    e("s_add_u32 s50, s50, 1")
    e("s_branch L_alayer")

    a.lab("L_loadB")
    srd(20, 6, 12 << 20)
    e("s_sub_u32 s44, s40, 6")
    e(f"v_lshrrev_b32 v4, 4, v{L}"); e(f"v_and_b32 v5, 15, v{L}")
    e("v_lshlrev_b32 v6, 1, v4"); e("v_xor_b32 v5, v5, v6"); e("v_lshlrev_b32 v5, 4, v5")
    e("v_lshl_add_u32 v3, v4, 11, v5"); e("v_xor_b32 v7, 128, v3")
    e("s_lshl_b32 s45, s44, 13"); e(f"s_add_u32 s45, s45, {B_RING}")
    e("s_lshl_b32 s46, s44, 16"); e("s_lshl_b32 s43, s42, 8"); e("s_add_u32 s46, s46, s43")
    e("s_mov_b32 s48, 0")
    e("s_mov_b32 s50, 0")
    def table(perm):
        for i in range(8):
            k0 = (16 * (i & 1) + 4 * (i >> 1)) if perm else 4 * i
            e(f"s_mov_b32 s{70+i}, {k0*2048 - (i & 3)*1024}")
    def issueB(slot, first=False):
        kidx("s94", "s48", first)
        e("s_lshl_b32 s49, s94, 17"); e("s_add_u32 s49, s49, s46"); e("s_add_u32 s49, s49, s50")
        for i in range(8):
            if i % 4 == 0: e(f"s_add_u32 m0, s45, {slot*16384 + (i//4)*4096}")
            e(f"s_add_u32 s47, s49, s{70+i}")
            vr = 7 if (i >> 1) & 1 else 3
            e(f"buffer_load_dwordx4 v{vr}, s[20:23], s47 offen offset:{(i&3)*1024} lds")
        e("s_add_u32 s48, s48, 1")
    table(False)
    issueB(0, True); issueB(1, True)
    if STAMPS: srd(24, 14, 256 << 20); e("v_mov_b32 v20, 0"); e("v_mov_b32 v21, 0")
    e("s_waitcnt vmcnt(8)"); e("s_barrier")
    issueB(2, True); issueB(3, True)
    e("s_mov_b32 s52, 3")
    a.lab("L_b0loop")
    for slot in range(4):
        e("s_waitcnt vmcnt(16)"); e("s_barrier"); issueB(slot, True)
    e("s_sub_u32 s52, s52, 1"); e("s_cmp_lg_u32 s52, 0"); e("s_cbranch_scc1 L_b0loop")
    table(True)
    e("s_mov_b32 s51, 1")
    a.lab("L_blayer")
    e(f"s_cmp_eq_u32 s51, {NL}"); e("s_cbranch_scc1 L_blast")
    e("s_lshl_b32 s50, s51, 21"); e("s_mov_b32 s48, 0")
    if o.get('wfix', 0): e("s_mov_b32 s50, 0")
    for slot in range(4):
        e("s_waitcnt vmcnt(16)"); e("s_barrier"); issueB(slot)
    e("s_barrier")
    e("s_mov_b32 s52, 3")
    a.lab("L_bloop")
    for slot in range(4):
        e("s_waitcnt vmcnt(16)"); e("s_barrier"); issueB(slot)
    e("s_sub_u32 s52, s52, 1"); e("s_cmp_lg_u32 s52, 0"); e("s_cbranch_scc1 L_bloop")
    e("s_add_u32 s51, s51, 1")
    e("s_branch L_blayer")
    a.lab("L_blast")
    e("s_waitcnt vmcnt(16)"); e("s_barrier")
    e("s_waitcnt vmcnt(8)"); e("s_barrier")
    e("s_waitcnt vmcnt(0)"); e("s_barrier")
    e("s_barrier")
    if STAMPS:
        e("s_branch L_stamp")
        if STAMPS == 2:
            a.lab("L_stampA")
            e("s_waitcnt lgkmcnt(0)"); e("v_mov_b32 v20, 0")
            for k in range(7): e(f"v_writelane_b32 v20, s{60+2*k}, {k}")
            e("v_writelane_b32 v20, s76, 7"); e("v_writelane_b32 v20, s77, 8")
        a.lab("L_stamp")
        e("s_lshl_b32 s43, s2, 3"); e("s_add_u32 s43, s43, s40"); e("s_lshl_b32 s43, s43, 9")
        e(f"s_add_u32 s43, s43, {STAMP_OFF}")
        e(f"v_lshlrev_b32 v22, 2, v{L}")
        e("buffer_store_dword v20, v22, s[24:27], s43 offen")
        e("buffer_store_dword v21, v22, s[24:27], s43 offen offset:256")
        e("s_waitcnt vmcnt(0)")
    a.lab("L_done")
    a.lab("L_end")
    e("s_endpgm")
    a.raw('.section .rodata,"a"'); a.raw(".p2align 6"); a.raw(f".amdhsa_kernel {KN}")
    for s in ["next_free_vgpr 256", "next_free_sgpr 102", "accum_offset 256", "group_segment_fixed_size 0",
              "kernarg_size 48", "user_sgpr_count 2", "user_sgpr_kernarg_segment_ptr 1", "system_sgpr_workgroup_id_x 1"]:
        a.raw("  .amdhsa_" + s)
    a.raw(".end_amdhsa_kernel")
    out = a.L
    if o.get('nodmaA', 0): out = [l for l in out if not (" lds" in l and ("s[16:19]" in l or "s[24:27]" in l))]
    if o.get('nodmaB', 0): out = [l for l in out if not (" lds" in l and "s[20:23]" in l)]
    if o.get('nopoll', 0):
        out2 = []
        for l in out:
            if l.strip() == "s_cmp_eq_u64 vcc, 0": l = "  s_cmp_eq_u32 s50, s50"
            out2.append(l)
        out = out2
    return "\n".join(out) + "\n"

if __name__ == "__main__":
    out = sys.argv[1]; opts = {}
    for x in sys.argv[2:]:
        k, v = x.split("=")
        try: v = int(v)
        except: v = v.replace('+', ' ')
        opts[k] = v
    open(out, "w").write(gen(opts))
```
